```python
import torch

def _softmax(x, axis=-1):
    return torch.softmax(x, dim=axis)
def _gelu(x):
    return torch.nn.functional.gelu(x, approximate="tanh")
def _silu(x):
    return torch.nn.functional.silu(x)
def _sigmoid(x):
    return torch.sigmoid(x)
def _layernorm(x, axis=-1, eps=1e-5):
    m = x.mean(dim=axis, keepdim=True)
    v = x.var(dim=axis, keepdim=True, unbiased=False)
    return (x - m) / torch.sqrt(v + eps)
def _scatter_add(tgt, idx, src, axis=0):
    return tgt.clone().index_add_(axis, idx, src)
def _segment_sum(src, seg, n):
    out = torch.zeros((n,) + src.shape[1:], dtype=src.dtype)
    return out.index_add_(0, seg, src)
def _pad(x, pw):
    flat = tuple(v for pair in reversed(pw) for v in pair)
    return torch.nn.functional.pad(x, flat)

kernel_name = 'recurrent_scan__sliding_block_cached__glu_gated_reglu__decode'

def setup_inputs():

    _w = (lambda a: (lambda t: t.to(torch.bfloat16) if t.is_floating_point() else t)(torch.as_tensor(a)))
    def _A_setup():
        B, Sq, D = 4, 1, 448
        Hq, Hkv, Sk, Dh = 16, 8, 4096, 256
        assert Hq % Hkv == 0, (Hq, Hkv)
        return {
            "x": _w((lambda *s: torch.randn(*s, dtype=torch.bfloat16) * 0.05)(B, Sq, D)),
            "k_cache": _w((lambda *s: torch.randn(*s, dtype=torch.bfloat16) * 1.6)(B, Hkv, Sk, Dh)),
            "v_cache": _w((lambda *s: torch.randn(*s, dtype=torch.bfloat16) * 1.6)(B, Hkv, Sk, Dh)),
            "wq": _w((lambda *s: torch.randn(*s, dtype=torch.bfloat16) * 1.6)(D, Hq * Dh) * (D ** -0.5)),
            "wo": _w((lambda *s: torch.randn(*s, dtype=torch.bfloat16) * 1.6)(Hq * Dh, D) * ((Hq * Dh) ** -0.5)),
        }
    _A_in = _A_setup()

    def _B_setup():
        B, S, D, F = 4, 1, 448, 1792
        return {
            "x": _w((lambda *s: torch.randn(*s, dtype=torch.bfloat16) * 0.05)(B, S, D)),
            "W_gate": _w((lambda *s: torch.randn(*s, dtype=torch.bfloat16) * 0.2)(D, F) * (2.0 / D) ** 0.5),
            "W_up": _w((lambda *s: torch.randn(*s, dtype=torch.bfloat16) * 0.2)(D, F) * (2.0 / D) ** 0.5),
            "W_down": _w((lambda *s: torch.randn(*s, dtype=torch.bfloat16) * 0.2)(F, D) * (1.0 / F) ** 0.5),
        }
    _B_in = _B_setup()

    return {
        "A_x": _A_in["x"],
        "A_k_cache": _A_in["k_cache"],
        "A_v_cache": _A_in["v_cache"],
        "A_wq": _A_in["wq"],
        "A_wo": _A_in["wo"],
        "B_x": _B_in["x"],
        "B_W_gate": _B_in["W_gate"],
        "B_W_up": _B_in["W_up"],
        "B_W_down": _B_in["W_down"],
    }

def reference(A_x, A_k_cache, A_v_cache, A_wq, A_wo, B_x, B_W_gate, B_W_up, B_W_down):
    def _A_ref(x, k_cache, v_cache, wq, wo):
        B, Sq, D = x.shape
        Hq, Dh = 16, 256
        Hkv, Sk = k_cache.shape[1], k_cache.shape[2]
        W = min(4096, max(256, Sk // 4))
        rep = Hq // Hkv
        q = (lambda x, *d: x.permute(*d))((x @ wq).reshape(B, Sq, Hq, Dh), 0, 2, 1, 3)
        k = (lambda x, n, axis: torch.repeat_interleave(x, n, dim=axis))(k_cache[:, :, Sk - W:, :], rep, axis=1)
        v = (lambda x, n, axis: torch.repeat_interleave(x, n, dim=axis))(v_cache[:, :, Sk - W:, :], rep, axis=1)
        scores = torch.einsum("bhqd,bhkd->bhqk", q, k) * (Dh ** -0.5)
        p = _softmax(scores, axis=-1)
        o = torch.einsum("bhqk,bhkd->bhqd", p, v)
        return (lambda x, *d: x.permute(*d))(o, 0, 2, 1, 3).reshape(B, Sq, Hq * Dh) @ wo

    def _B_ref(x, W_gate, W_up, W_down):
        gate = torch.einsum("bsd,df->bsf", x, W_gate)
        up = torch.einsum("bsd,df->bsf", x, W_up)
        gate = gate * (lambda x, dt: x.to(dt))(gate > 0, gate.dtype)
        h = gate * up
        return torch.einsum("bsf,fd->bsd", h, W_down)

    x = A_x
    xn = _layernorm(x, axis=-1)
    s = _A_ref(xn, A_k_cache, A_v_cache, A_wq, A_wo)
    g = _silu(_B_ref(xn, B_W_gate, B_W_up, B_W_down))
    return x + s * g
```

```python
NAME = "recurrent_scan__sliding_block_cached__glu_gated_reglu__decode"

class Asm:
    def __init__(self):
        self.lines = []
        self.nlab = 0
    def __call__(self, s):
        for l in s.strip("\n").split("\n"):
            l = l.strip()
            if not l: continue
            self.lines.append(l if l.endswith(":") else "    " + l)
    def c(self, s):
        self.lines.append("    ; " + s)
    def label(self, base):
        self.nlab += 1
        return "L_%s_%d" % (base, self.nlab)
    def text(self):
        return "\n".join(self.lines) + "\n"

def vr(a, n=1):
    return "v%d" % a if n == 1 else "v[%d:%d]" % (a, a + n - 1)
def sr(a, n=1):
    return "s%d" % a if n == 1 else "s[%d:%d]" % (a, a + n - 1)
def ar(a, n=1):
    return "a%d" % a if n == 1 else "a[%d:%d]" % (a, a + n - 1)

HEADER = """; Kernarg layout for this problem (96 bytes, ptrs only, base s[0:1]):
"""

def kernel_file(kernels, launches, extra_header=""):
    out = HEADER + extra_header
    if len(launches) == 1 and launches[0][0] == NAME + "_kernel":
        _, g, b, lds = launches[0]
        out += "; @launch grid=(%d,1,1) block=(%d,1,1) lds=%d\n" % (g, b, lds)
    else:
        for l, g, b, lds in launches:
            out += "; @launch kernel=%s grid=(%d,1,1) block=(%d,1,1) lds=%d\n" % (l, g, b, lds)
    out += '.amdgcn_target "amdgcn-amd-amdhsa--gfx950"\n.text\n'
    for label, body, *_ in kernels:
        out += ".globl %s\n.p2align 8\n.type %s,@function\n%s:\n%s" % (label, label, label, body)
    out += '.section .rodata,"a"\n'
    for label, body, vgpr, sgpr, accum in kernels:
        out += """.p2align 6
.amdhsa_kernel %s
  .amdhsa_next_free_vgpr %d
  .amdhsa_next_free_sgpr %d
  .amdhsa_accum_offset %d
  .amdhsa_group_segment_fixed_size 0
  .amdhsa_kernarg_size 96
  .amdhsa_user_sgpr_count 2
  .amdhsa_user_sgpr_kernarg_segment_ptr 1
  .amdhsa_system_sgpr_workgroup_id_x 1
  .amdhsa_float_denorm_mode_32 3
.end_amdhsa_kernel
""" % (label, vgpr, sgpr, accum)
    return out
```

```python
import sys
sys.path.insert(0, "tools")
from asmlib import *
import hazard

EPOCH = 0
QBUF = 0x1000
SBUF = 0x20000
HBUF = 0x60000
YBUF = 0x70000
PBUF = 0x100000
WS_REC = 0x200000
STAMP_OFF = 128 << 20
L_V = 0
L_WO = 65536
L_WQ = L_WO + 57344
L_WGU = L_WQ + 14336
UPOFF = 7232
L_WD = L_WGU + 14400
L_XN = L_WD + 7168
XNS = 912
L_OACC = L_XN + 4 * XNS
L_STAT = L_OACC + 256
L_FLAG = L_STAT + 128
LDS_BYTES = L_OACC + 512
L_QL = L_WQ;  QLS = 544
L_PL = L_WQ + 2048; PLS = 2080
L_HL = L_WGU; HLS = 464
F_XN, F_Q, F_PROG, F_STAT, F_O = 0, 4, 8, 12, 16
assert LDS_BYTES <= 163840

LOG2E = 1.4426950408889634
import struct
def f2u(x): return "0x%08x" % struct.unpack("<I", struct.pack("<f", x))[0]

def gen(D=24, pol_kv="nt", pol_w="nt", stamps=False, NST=24):
    a = Asm()
    S_TAG = 15
    used_stamps = []
    def stamp(k):
        if stamps:
            a(f"s_memrealtime s[{64+2*(len(used_stamps))}:{65+2*(len(used_stamps))}]")
            used_stamps.append(k)
    def flush_stamps():
        if stamps and used_stamps:
            a(f"s_waitcnt lgkmcnt(0)\ns_add_u32 s60, s38, {STAMP_OFF}\ns_addc_u32 s61, s39, 0\ns_mul_i32 s62, s2, {NST*8}\nv_mov_b32 v1, s62\ns_mov_b64 exec, 1")
            for i, k in enumerate(used_stamps):
                a(f"v_mov_b32 v2, s{64+2*i}\nv_mov_b32 v3, s{65+2*i}\nglobal_store_dwordx2 v1, v[2:3], s[60:61] offset:{8*k}\ns_nop 1")
        used_stamps.clear()
    def srd(reg, ptr, size):
        a(f"s_mov_b32 s{reg}, s{ptr}\ns_mov_b32 s{reg+1}, s{ptr+1}\ns_mov_b32 s{reg+2}, {size}\ns_mov_b32 s{reg+3}, 0x20000")
    def lds_wait(vflag, off, need, sleep=0, vt=2):
        l = a.label("lw"); d = a.label("lwd")
        a(f"s_mov_b32 s12, 0x20000\n{l}:\nds_read_b32 v{vt}, v{vflag} offset:{off}\ns_waitcnt lgkmcnt(0)\nv_readfirstlane_b32 s13, v{vt}\ns_cmp_ge_u32 s13, {need}\ns_cbranch_scc1 {d}")
        if sleep: a(f"s_sleep {sleep}")
        a(f"s_sub_u32 s12, s12, 1\ns_cbranch_scc0 {l}\n{d}:")
    def lds_signal_set(vflag, off, val, vt=2):
        a(f"v_mov_b32 v{vt}, {val}\nds_write_b32 v{vflag}, v{vt} offset:{off}")
    def lds_signal_add(vflag, off, vt=2):
        a(f"s_mov_b64 exec, 1\nv_mov_b32 v{vt}, 1\nds_add_u32 v{vflag}, v{vt} offset:{off}\ns_mov_b64 exec, -1")
    def get_tag():
        a(f"s_waitcnt lgkmcnt(0)\ns_mul_i32 s{S_TAG}, s14, 0x9E3779B1\ns_add_u32 s{S_TAG}, s{S_TAG}, 0x632BE5AB")
    def poll(loads, tagregs, sleep=0):
        l = a.label("pl"); d = a.label("pld")
        a(f"s_mov_b32 s12, 0x2000\n{l}:")
        for x in loads: a(x)
        a("s_waitcnt vmcnt(0)")
        a(f"v_cmp_ne_u32 vcc, s{S_TAG}, v{tagregs[0]}")
        for t in tagregs[1:]:
            a(f"v_cmp_ne_u32 s[10:11], s{S_TAG}, v{t}\ns_or_b64 vcc, vcc, s[10:11]")
        a(f"s_cbranch_scc0 {d}")
        if sleep: a(f"s_sleep {sleep}")
        a(f"s_sub_u32 s12, s12, 1\ns_cbranch_scc0 {l}\n{d}:")
    def select_by_g(dst, r0, r1, r2, r3):
        a(f"v_cndmask_b32 v{dst}, v{r0}, v{r1}, s[4:5]\nv_cndmask_b32 v{dst}, v{dst}, v{r2}, s[6:7]\nv_cndmask_b32 v{dst}, v{dst}, v{r3}, s[8:9]")
    def gmasks():
        a("s_mov_b32 s4, 0xffff0000\ns_mov_b32 s5, 0\ns_mov_b32 s6, 0\ns_mov_b32 s7, 0xffff\ns_mov_b32 s8, 0\ns_mov_b32 s9, 0xffff0000")
    def dpp_reduce(op, v, rors, tmp=None, x16=False, x32=False):
        for r in rors:
            a(f"{op}_dpp v{v}, v{v}, v{v} row_ror:{r} row_mask:0xf bank_mask:0xf")
        if x16: a(f"v_mov_b32 v{tmp}, v{v}\nv_permlane16_swap_b32 v{v}, v{tmp}\n{op} v{v}, v{v}, v{tmp}")
        if x32: a(f"v_mov_b32 v{tmp}, v{v}\nv_permlane32_swap_b32 v{v}, v{tmp}\n{op} v{v}, v{v}, v{tmp}")
    def round_bf16(dst, src):
        a(f"v_cvt_pk_bf16_f32 v{dst}, v{src}, v{src}\nv_and_b32 v{dst}, 0xffff0000, v{dst}")
    def proj(nsteps, areg, breg, dreg, vaddr, step_off, sec_off):
        for t0 in range(0, nsteps, 7):
            for t in range(t0, t0 + 7):
                a(f"ds_read_b64_tr_b16 {vr(breg+4*t,2)}, v{vaddr} offset:{t*step_off}")
                a(f"ds_read_b64_tr_b16 {vr(breg+4*t+2,2)}, v{vaddr} offset:{t*step_off+sec_off}")
            for t in range(t0, t0 + 7):
                a(f"s_waitcnt lgkmcnt({2*(t0+6-t)})")
                c = "0" if t == 0 else vr(dreg, 4)
                a(f"v_mfma_f32_16x16x32_bf16 {vr(dreg,4)}, {vr(areg+4*t,4)}, {vr(breg+4*t,4)}, {c}")

    a("s_cmp_ge_u32 s2, 256\ns_cbranch_scc1 L_exit")
    stamp0 = None
    if stamps: a("s_memrealtime s[62:63]")
    a(f"""
    s_load_dwordx16 s[16:31], s[0:1], 0
    s_load_dwordx8 s[32:39], s[0:1], 64
    v_lshrrev_b32 v1, 6, v0
    v_and_b32 v0, 63, v0
    v_mov_b32 v2, 0
    v_readfirstlane_b32 s3, v1
    v_mov_b32 v3, 0
    v_lshlrev_b32 v4, 3, v0
    v_add_u32 v4, {L_OACC}, v4
    s_cmp_lg_u32 s3, 0
    s_cbranch_scc1 L_noinit
    ds_write_b64 v4, v[2:3]
    L_noinit:
    s_and_b32 s40, s2, 7
    s_lshr_b32 s41, s2, 3         ; j = wg>>3
    s_lshr_b32 s42, s41, 3        ; b
    s_and_b32 s43, s41, 7         ; c
    s_lshl_b32 s44, s42, 3
    s_add_u32 s44, s44, s40
    v_mov_b32 v1, {L_FLAG}
    v_lshrrev_b32 v5, 4, v0       ; g
    v_and_b32 v6, 15, v0          ; n
    v_bfe_u32 v7, v0, 2, 2
    v_and_b32 v8, 3, v0
    s_waitcnt lgkmcnt(0)
    s_barrier
    s_load_dword s14, s[38:39], {EPOCH}
    """)
    srd(48, 38, WS_REC)
    a("s_cmp_eq_u32 s3, 8\ns_cbranch_scc1 L_loader\ns_cmp_eq_u32 s3, 9\ns_cbranch_scc1 L_qwave\ns_cmp_eq_u32 s3, 10\ns_cbranch_scc1 L_fwave")

    a.c("======== attention waves 0..7")
    srd(52, 18, 0x4000000)
    a(f"""
    s_lshl_b32 s45, s44, 21
    s_lshl_b32 s46, s43, 16
    s_add_u32 s45, s45, s46
    s_lshl_b32 s46, s3, 13
    s_add_u32 s45, s45, s46
    s_add_u32 s45, s45, {3072*512}
    v_lshlrev_b32 v9, 9, v6
    v_lshl_add_u32 v9, v5, 4, v9
    """)
    KR = 16; QR = 48
    for t in range(8):
        a(f"buffer_load_dwordx4 {vr(KR+4*t,4)}, v9, s[52:55], s45 offen offset:{t*64} {pol_kv}")
    if stamps:
        a("s_mov_b64 s[64:65], s[62:63]"); used_stamps.append(0)
    stamp(1)
    get_tag()
    a(f"""
    v_and_b32 v10, 1, v0
    v_mul_u32_u24 v11, {QLS}, v10
    v_lshl_add_u32 v11, v5, 4, v11
    v_add_u32 v11, {L_QL}, v11
    v_lshlrev_b32 v12, 9, v10
    v_lshl_add_u32 v12, v5, 4, v12
    s_lshl_b32 s46, s3, 6
    v_add_u32 v12, s46, v12
    s_lshl_b32 s46, s44, 3
    s_add_u32 s47, s46, s43
    s_lshl_b32 s47, s47, 10
    s_add_u32 s47, s47, {SBUF}
    s_add_u32 s56, s46, s3
    s_lshl_b32 s56, s56, 10
    s_add_u32 s56, s56, {SBUF}
    v_lshlrev_b32 v13, 4, v0              ; l*16
    v_mov_b32 v85, s{S_TAG}
    v_mov_b32 v87, s{S_TAG}
    """)
    lds_wait(1, F_Q, 1, sleep=1)
    stamp(2)
    for t in range(8):
        a(f"ds_read_b128 {vr(QR+4*t,4)}, v11 offset:{t*64}")
    for t in range(8):
        a(f"s_waitcnt vmcnt({7-t}) lgkmcnt({7-t})")
        c = "0" if t == 0 else "v[80:83]"
        a(f"v_mfma_f32_16x16x32_bf16 v[80:83], {vr(KR+4*t,4)}, {vr(QR+4*t,4)}, {c}")
    a(f"""
    v_cvt_pk_bf16_f32 v84, v80, v81
    v_cvt_pk_bf16_f32 v86, v82, v83
    s_mov_b32 exec_lo, 0x00030003
    s_mov_b32 exec_hi, 0x00030003
    buffer_store_dwordx4 v[84:87], v12, s[48:51], s47 offen sc1
    s_mov_b64 exec, -1
    """)
    stamp(3)
    a(f"""
    v_lshrrev_b32 v14, 5, v0
    v_and_b32 v15, 31, v0
    v_mul_u32_u24 v32, {PLS}, v14
    v_lshl_add_u32 v32, v15, 3, v32
    s_lshl_b32 s46, s3, 8
    s_add_u32 s46, s46, {L_PL}
    v_add_u32 v32, s46, v32
    v_mul_u32_u24 v33, {PLS}, v10
    v_lshl_add_u32 v33, v5, 4, v33
    v_add_u32 v33, s46, v33
    v_lshlrev_b32 v34, 6, v14
    v_add_u32 v34, {L_STAT}, v34
    s_lshl_b32 s46, s3, 2
    v_add_u32 v35, s46, v34
    v_and_b32 v36, 7, v0
    v_lshl_add_u32 v36, v36, 2, v34
    s_mov_b32 s57, {f2u(LOG2E/16)}
    """)
    poll([f"buffer_load_dwordx4 v[88:91], v13, s[48:51], s56 offen sc1"], [89, 91])
    stamp(4)
    a(f"""
    v_lshlrev_b32 v92, 16, v88
    v_and_b32 v93, 0xffff0000, v88
    v_lshlrev_b32 v94, 16, v90
    v_and_b32 v95, 0xffff0000, v90
    v_max_f32 v96, v92, v93
    v_max3_f32 v96, v96, v94, v95
    """)
    dpp_reduce("v_max_f32", 96, (8, 4, 2, 1), tmp=97, x16=True)
    a(f"""
    v_sub_f32 v98, v92, v96
    v_sub_f32 v99, v93, v96
    v_sub_f32 v100, v94, v96
    v_sub_f32 v101, v95, v96
    v_mul_f32 v98, s57, v98
    v_mul_f32 v99, s57, v99
    v_mul_f32 v100, s57, v100
    v_mul_f32 v101, s57, v101
    v_exp_f32 v98, v98
    v_exp_f32 v99, v99
    v_exp_f32 v100, v100
    v_exp_f32 v101, v101
    v_add_f32 v98, v98, v99
    v_add_f32 v100, v100, v101
    v_add_f32 v98, v98, v100
    """)
    dpp_reduce("v_add_f32", 98, (8, 4, 2, 1), tmp=97, x16=True)
    a(f"""
    s_mov_b32 exec_lo, 1
    s_mov_b32 exec_hi, 1
    ds_write2_b32 v35, v96, v98 offset0:0 offset1:8
    s_mov_b64 exec, -1
    s_waitcnt lgkmcnt(0)
    """)
    lds_signal_add(1, F_STAT)
    lds_wait(1, F_STAT, 8)
    a(f"""
    ds_read2_b32 v[98:99], v36 offset0:0 offset1:8
    s_waitcnt lgkmcnt(0)
    v_mov_b32 v96, v98
    """)
    dpp_reduce("v_max_f32", 96, (4, 2, 1))
    a(f"""
    v_sub_f32 v98, v98, v96
    v_mul_f32 v98, s57, v98
    v_exp_f32 v98, v98
    v_sub_f32 v92, v92, v96
    v_sub_f32 v93, v93, v96
    v_mul_f32 v98, v98, v99
    """)
    dpp_reduce("v_add_f32", 98, (4, 2, 1))
    a(f"""
    v_sub_f32 v94, v94, v96
    v_sub_f32 v95, v95, v96
    v_rcp_f32 v98, v98
    v_mul_f32 v92, s57, v92
    v_mul_f32 v93, s57, v93
    v_mul_f32 v94, s57, v94
    v_mul_f32 v95, s57, v95
    v_exp_f32 v92, v92
    v_exp_f32 v93, v93
    v_exp_f32 v94, v94
    v_exp_f32 v95, v95
    v_mul_f32 v92, v92, v98
    v_mul_f32 v93, v93, v98
    v_mul_f32 v94, v94, v98
    v_mul_f32 v95, v95, v98
    v_cvt_pk_bf16_f32 v92, v92, v93
    v_cvt_pk_bf16_f32 v93, v94, v95
    ds_write_b64 v32, v[92:93]
    s_waitcnt lgkmcnt(0)
    """)
    PR = 16
    for t in range(4):
        a(f"ds_read_b128 {vr(PR+4*t,4)}, v33 offset:{t*64}")
    stamp(5)
    a(f"""
    v_lshl_add_u32 v37, v5, 3, v7          ; 8g+r
    s_lshl_b32 s46, s3, 7
    v_add_u32 v37, s46, v37
    v_lshlrev_b32 v37, 6, v37
    v_lshl_add_u32 v37, v8, 3, v37
    v_and_b32 v38, 1, v5
    v_lshlrev_b32 v38, 5, v38
    v_add_u32 v39, v37, v38
    v_xor_b32 v38, 32, v38
    v_add_u32 v40, v37, v38
    v_lshl_add_u32 v41, v5, 2, v7          ; 4g+r
    v_mul_u32_u24 v41, 896, v41
    v_lshl_add_u32 v41, v8, 3, v41
    s_lshl_b32 s46, s3, 7
    s_add_u32 s46, s46, {L_WO}
    v_add_u32 v41, s46, v41
    v_lshl_add_u32 v42, v10, 2, v5
    v_lshlrev_b32 v42, 5, v42
    v_add_u32 v42, {L_OACC}, v42
    v_lshlrev_b32 v43, 5, v5
    v_add_u32 v43, {L_OACC}, v43
    v_lshrrev_b32 v44, 3, v0
    v_lshlrev_b32 v44, 12, v44
    v_and_b32 v45, 7, v0
    v_lshl_add_u32 v44, v45, 3, v44
    s_mul_i32 s46, s42, 56
    s_lshl_b32 s47, s3, 3
    s_add_u32 s46, s46, s47
    s_lshl_b32 s46, s46, 12
    s_lshl_b32 s47, s40, 3
    s_add_u32 s47, s47, s43
    s_lshl_b32 s47, s47, 6
    s_add_u32 s58, s46, s47
    s_add_u32 s58, s58, {PBUF}
    """)
    gmasks()
    WB = 48
    a("s_cmp_eq_u32 s3, 7\ns_cbranch_scc1 L_skipwo")
    lds_wait(1, F_PROG, 56, sleep=1)
    n = 0
    for h in range(2):
        for j in range(4):
            for half in range(2):
                a(f"ds_read_b64_tr_b16 {vr(WB+16*h+4*j+2*half,2)}, v41 offset:{h*28672+half*14336+j*32}")
                n += 1
                if n == 8: a("s_waitcnt lgkmcnt(0)")
    a("L_skipwo:")
    stamp(6)
    a(f"s_lshl_b32 s46, s3, 1\ns_add_u32 s46, s46, 58")
    for t in range(4):
        lds_wait(1, F_PROG, "s46")
        a(f"""
        ds_read_b64_tr_b16 v[92:93], v39 offset:{t*2048}
        ds_read_b64_tr_b16 v[94:95], v39 offset:{t*2048+256}
        ds_read_b64_tr_b16 v[96:97], v40 offset:{t*2048}
        ds_read_b64_tr_b16 v[98:99], v40 offset:{t*2048+256}
        s_add_u32 s46, s46, 16
        s_waitcnt lgkmcnt(2)
        v_mfma_f32_16x16x32_bf16 v[80:83], v[92:95], {vr(PR+4*t,4)}, {'0' if t==0 else 'v[80:83]'}
        s_waitcnt lgkmcnt(0)
        v_mfma_f32_16x16x32_bf16 v[84:87], v[96:99], {vr(PR+4*t,4)}, {'0' if t==0 else 'v[84:87]'}
        """)
    stamp(7)
    a("s_mov_b32 exec_lo, 0x00030003\ns_mov_b32 exec_hi, 0x00030003")
    for i in range(8):
        a(f"ds_add_f32 v42, v{80+i} offset:{4*i}")
    a("s_waitcnt lgkmcnt(0)")
    lds_signal_add(1, F_O)
    a("s_cmp_eq_u32 s3, 7\ns_cbranch_scc1 L_adone")
    lds_wait(1, F_O, 8)
    a(f"""
    ds_read_b128 v[92:95], v43
    ds_read_b128 v[96:99], v43 offset:16
    ds_read_b128 v[100:103], v43 offset:128
    ds_read_b128 v[104:107], v43 offset:144
    v_mov_b32 v11, s{S_TAG}
    s_waitcnt lgkmcnt(2)
    v_cvt_pk_bf16_f32 v92, v92, v93
    v_cvt_pk_bf16_f32 v93, v94, v95
    v_cvt_pk_bf16_f32 v94, v96, v97
    v_cvt_pk_bf16_f32 v95, v98, v99
    s_waitcnt lgkmcnt(0)
    v_cvt_pk_bf16_f32 v100, v100, v101
    v_cvt_pk_bf16_f32 v101, v102, v103
    v_cvt_pk_bf16_f32 v102, v104, v105
    v_cvt_pk_bf16_f32 v103, v106, v107
    """)
    for j in range(4):
        a(f"v_mfma_f32_16x16x32_bf16 {vr(16+4*j,4)}, v[92:95], {vr(WB+4*j,4)}, 0")
    for j in range(4):
        a(f"v_mfma_f32_16x16x32_bf16 {vr(16+4*j,4)}, v[100:103], {vr(WB+16+4*j,4)}, {vr(16+4*j,4)}")
    select_by_g(10, 16, 20, 24, 28)
    a("buffer_store_dwordx2 v[10:11], v44, s[48:51], s58 offen sc1")
    a("L_adone:")
    stamp(8)
    if stamps:
        a("s_cmp_lg_u32 s3, 0\ns_cbranch_scc1 L_exit")
        flush_stamps()
    a("s_endpgm")

    a.c("======== loader wave: wo and V tiles by LDS-DMA, paced")
    a("L_loader:\ns_setprio 2")
    srd(52, 24, 4096 * 896)
    srd(56, 20, 0x4000000)
    a(f"""
    v_lshlrev_b32 v9, 4, v0
    s_lshl_b32 s45, s40, 9
    s_lshl_b32 s46, s43, 5
    s_add_u32 s45, s45, s46
    s_mul_i32 s45, s45, 896
    v_lshrrev_b32 v10, 2, v0
    v_lshlrev_b32 v10, 9, v10
    v_lshrrev_b32 v11, 5, v0
    v_lshlrev_b32 v11, 1, v11
    v_xor_b32 v11, v11, v8
    v_lshl_add_u32 v10, v11, 4, v10
    s_lshl_b32 s46, s44, 21
    s_lshl_b32 s47, s43, 6
    s_add_u32 s46, s46, s47
    s_add_u32 s46, s46, {3072*512}        ; V base
    """)
    issued = [0]; signalled = [0]
    def signal(done):
        if done >= 56 and done % 2 == 0 and done > signalled[0]:
            lds_signal_set(1, F_PROG, done); signalled[0] = done
    def pace():
        issued[0] += 1
        if issued[0] >= D:
            a(f"s_waitcnt vmcnt({D-1})")
            signal(issued[0] - (D - 1))
    for h in range(2):
        for i in range(28):
            if i % 4 == 0:
                a(f"s_mov_b32 m0, {L_WO+h*28672+i*1024}\ns_add_u32 s47, s45, {h*256*896+i*1024}")
            a(f"buffer_load_dwordx4 v9, s[52:55], s47 offen offset:{(i%4)*1024} {pol_w} lds")
            pace()
    stamp(9)
    for t in range(4):
        for w in range(8):
            for s in range(2):
                row = 128 * w + 32 * t + 16 * s
                a(f"s_mov_b32 m0, {L_V+row*64}\ns_add_u32 s47, s46, {row*512}")
                a(f"buffer_load_dwordx4 v10, s[56:59], s47 offen {pol_kv} lds")
                pace()
    stamp(10)
    for left in range(D - 2, -1, -1):
        done = 120 - left
        if done % 2 == 0:
            a(f"s_waitcnt vmcnt({left})")
            signal(done)
    stamp(11)
    flush_stamps()
    a("s_endpgm")

    a.c("======== q wave: layernorm, q projection, q hand-off, final reduction")
    a("L_qwave:\ns_setprio 3")
    srd(52, 16, 3584)
    srd(56, 22, 448 * 8192)
    XR = 16
    a(f"""
    v_mul_u32_u24 v9, 896, v5
    v_lshl_add_u32 v9, v6, 3, v9
    """)
    for u in range(7):
        a(f"buffer_load_dwordx2 {vr(XR+2*u,2)}, v9, s[52:55], 0 offen offset:{u*128}")
    a(f"""
    v_lshrrev_b32 v10, 1, v0
    v_lshlrev_b32 v10, 13, v10
    v_and_b32 v11, 1, v0
    v_lshl_add_u32 v10, v11, 4, v10
    s_lshl_b32 s45, s40, 10
    s_lshl_b32 s46, s41, 5
    s_add_u32 s45, s45, s46
    """)
    for i in range(14):
        a(f"s_mov_b32 m0, {L_WQ+i*1024}\ns_add_u32 s46, s45, {i*262144}")
        a(f"buffer_load_dwordx4 v10, s[56:59], s46 offen {pol_w} lds")
    a(f"""
    s_and_b32 s60, s2, 3
    s_lshr_b32 s47, s2, 2
    s_mul_i32 s45, s60, 896
    s_lshl_b32 s46, s47, 4
    s_add_u32 s61, s45, s46
    v_lshlrev_b32 v12, 2, v8
    buffer_load_dword v13, v12, s[52:55], s61 offen
    """)
    stamp(12)
    gmasks()
    get_tag()
    a("s_waitcnt vmcnt(15)")
    U = 32
    for u in range(14):
        a(f"v_lshlrev_b32 v{U+2*u}, 16, v{XR+u}\nv_and_b32 v{U+2*u+1}, 0xffff0000, v{XR+u}")
    a(f"v_pk_add_f32 v[60:61], v[{U}:{U+1}], v[{U+2}:{U+3}]")
    for u in range(2, 14):
        a(f"v_pk_add_f32 v[60:61], v[60:61], v[{U+2*u}:{U+2*u+1}]")
    a("v_add_f32 v60, v60, v61")
    dpp_reduce("v_add_f32", 60, (8, 4, 2, 1))
    a(f"v_mul_f32 v60, {f2u(1/448)}, v60\nv_mov_b32 v61, v60")
    for u in range(14):
        a(f"v_pk_add_f32 v[64:65], v[{U+2*u}:{U+2*u+1}], v[60:61] neg_lo:[0,1] neg_hi:[0,1]")
        if u == 0: a("v_pk_mul_f32 v[62:63], v[64:65], v[64:65]")
        else: a("v_pk_fma_f32 v[62:63], v[64:65], v[64:65], v[62:63]")
    a("v_add_f32 v62, v62, v63")
    dpp_reduce("v_add_f32", 62, (8, 4, 2, 1))
    a(f"v_mul_f32 v62, {f2u(1/448)}, v62")
    round_bf16(62, 62)
    a(f"v_add_f32 v62, {f2u(1e-5)}, v62")
    round_bf16(62, 62)
    a("v_sqrt_f32 v62, v62")
    round_bf16(62, 62)
    a("v_rcp_f32 v62, v62")
    round_bf16(60, 60)
    a("v_mov_b32 v61, v60\nv_mov_b32 v63, v62")
    for u in range(14):
        a(f"v_pk_add_f32 v[64:65], v[{U+2*u}:{U+2*u+1}], v[60:61] neg_lo:[0,1] neg_hi:[0,1]")
        a(f"v_cvt_pk_bf16_f32 v64, v64, v65")
        a(f"v_and_b32 v65, 0xffff0000, v64\nv_lshlrev_b32 v64, 16, v64")
        a(f"v_pk_mul_f32 v[64:65], v[64:65], v[62:63]")
        a(f"v_cvt_pk_bf16_f32 v{XR+u}, v64, v65")
    a(f"""
    v_mul_u32_u24 v9, {XNS}, v5
    v_lshl_add_u32 v9, v6, 3, v9
    v_add_u32 v9, {L_XN}, v9
    """)
    for u in range(7):
        a(f"ds_write_b64 v9, {vr(XR+2*u,2)} offset:{u*128}")
    a(f"""
    v_mul_u32_u24 v9, {XNS}, v8
    v_lshl_add_u32 v9, v5, 4, v9
    v_add_u32 v9, {L_XN}, v9
    s_waitcnt lgkmcnt(0)
    """)
    lds_signal_set(1, F_XN, 1)
    AR = 16; BR = 72
    for t in range(14):
        a(f"ds_read_b128 {vr(AR+4*t,4)}, v9 offset:{t*64}")
        if t == 6: a("s_waitcnt lgkmcnt(0)")
    a(f"""
    v_lshl_add_u32 v9, v5, 3, v7
    v_lshlrev_b32 v9, 5, v9
    v_lshl_add_u32 v9, v8, 3, v9
    v_add_u32 v9, {L_WQ}, v9
    v_lshlrev_b32 v10, 14, v5              ; b=g: g*8*2048
    v_lshrrev_b32 v11, 1, v6
    v_lshl_add_u32 v10, v11, 3, v10
    s_lshl_b32 s45, s40, 11
    s_lshl_b32 s46, s41, 6
    s_add_u32 s45, s45, s46
    s_add_u32 s45, s45, {QBUF}
    """)
    stamp(13)
    a("s_waitcnt vmcnt(1) lgkmcnt(0)")
    stamp(14)
    proj(14, AR, BR, 128, 9, 1024, 128)
    select_by_g(14, 128, 129, 130, 131)
    a(f"""
    v_mov_b32 v133, s{S_TAG}
    v_mov_b32_dpp v15, v14 quad_perm:[1,0,3,2] row_mask:0xf bank_mask:0xf
    v_cvt_pk_bf16_f32 v132, v14, v15
    s_mov_b32 exec_lo, 0x55555555
    s_mov_b32 exec_hi, 0x55555555
    buffer_store_dwordx2 v[132:133], v10, s[48:51], s45 offen sc1
    s_mov_b64 exec, -1
    """)
    stamp(15)
    a(f"""
    s_lshl_b32 s45, s44, 11
    s_add_u32 s45, s45, {QBUF}
    v_lshlrev_b32 v9, 4, v0
    v_lshlrev_b32 v10, 3, v0
    v_add_u32 v10, {L_QL}, v10
    """)
    poll([f"buffer_load_dwordx4 v[16:19], v9, s[48:51], s45 offen sc1",
          f"buffer_load_dwordx4 v[20:23], v9, s[48:51], s45 offen offset:1024 sc1"], [17, 19, 21, 23])
    a(f"""
    ds_write2_b32 v10, v16, v18 offset0:0 offset1:1
    ds_write2_b32 v10, v20, v22 offset0:{QLS//4} offset1:{QLS//4+1}
    s_waitcnt lgkmcnt(0)
    """)
    lds_signal_set(1, F_Q, 1)
    stamp(16)
    a("s_cmp_ge_u32 s2, 224\ns_cbranch_scc1 L_qdone")
    a(f"""
    s_mul_i32 s45, s60, 56
    s_add_u32 s45, s45, s47
    s_lshl_b32 s46, s45, 9
    s_add_u32 s46, s46, {YBUF}
    s_lshl_b32 s45, s45, 12
    s_add_u32 s45, s45, {PBUF}
    v_and_b32 v10, 31, v0
    v_lshlrev_b32 v10, 4, v10
    """)
    poll([f"buffer_load_dwordx4 v[16:19], v10, s[48:51], s46 offen sc1"], [17, 19], sleep=2)
    dpp_reduce("v_add_f32", 16, (4, 8), tmp=20, x16=True)
    dpp_reduce("v_add_f32", 18, (4, 8), tmp=20, x16=True)
    for r in (16, 18):
        round_bf16(r, r)
        a(f"""
        v_mul_f32 v20, {f2u(-LOG2E)}, v{r}
        v_exp_f32 v20, v20
        v_add_f32 v20, 1.0, v20
        v_rcp_f32 v20, v20
        v_mul_f32 v{r}, v{r}, v20
        """)
        round_bf16(r, r)
    a("v_lshlrev_b32 v14, 16, v13\nv_and_b32 v15, 0xffff0000, v13")
    srd(52, 34, 3584)
    stamp(17)
    poll([f"buffer_load_dwordx4 {vr(24+4*t,4)}, v9, s[48:51], s45 offen offset:{t*1024} sc1" for t in range(4)],
         [25, 27, 29, 31, 33, 35, 37, 39])
    stamp(18)
    a("""
    v_add_f32 v24, v24, v28
    v_add_f32 v26, v26, v30
    v_add_f32 v32, v32, v36
    v_add_f32 v34, v34, v38
    v_add_f32 v24, v24, v32
    v_add_f32 v26, v26, v34
    """)
    for r in (4, 8):
        a(f"v_add_f32_dpp v24, v24, v24 row_ror:{r} row_mask:0xf bank_mask:0xf\nv_add_f32_dpp v26, v26, v26 row_ror:{r} row_mask:0xf bank_mask:0xf")
    for sw in ("v_permlane16_swap_b32", "v_permlane32_swap_b32"):
        a(f"v_mov_b32 v25, v24\nv_mov_b32 v27, v26\n{sw} v24, v25\n{sw} v26, v27\nv_add_f32 v24, v24, v25\nv_add_f32 v26, v26, v27")
    a("""
    v_cvt_pk_bf16_f32 v24, v24, v26
    v_and_b32 v26, 0xffff0000, v24
    v_lshlrev_b32 v24, 16, v24
    v_mul_f32 v24, v24, v16
    v_mul_f32 v26, v26, v18
    v_cvt_pk_bf16_f32 v24, v24, v26
    v_and_b32 v26, 0xffff0000, v24
    v_lshlrev_b32 v24, 16, v24
    v_add_f32 v24, v24, v14
    v_add_f32 v26, v26, v15
    v_cvt_pk_bf16_f32 v24, v24, v26
    s_mov_b64 exec, 15
    buffer_store_dword v24, v12, s[52:55], s61 offen
    """)
    a(f"""
    s_cmp_lg_u32 s2, 0
    s_cbranch_scc1 L_qdone
    s_mov_b64 exec, 1
    v_mov_b32 v2, s{S_TAG}
    v_mov_b32 v3, 0
    buffer_store_dword v2, v3, s[48:51], 0 offen offset:{EPOCH}
    L_qdone:
    """)
    stamp(19)
    flush_stamps()
    a("s_endpgm")

    a.c("======== ffn wave")
    a("L_fwave:\ns_cmp_ge_u32 s41, 28\ns_cbranch_scc1 L_exit\ns_setprio 1")
    srd(52, 28, 448 * 3584)
    srd(56, 30, 448 * 3584)
    a(f"""
    v_mul_u32_u24 v9, 3584, v0
    s_mul_i32 s45, s40, 448
    s_lshl_b32 s46, s41, 4
    s_add_u32 s45, s45, s46
    """)
    for m, (srdr, base) in enumerate(((52, L_WGU), (56, L_WGU + UPOFF))):
        for i in range(7):
            a(f"s_mov_b32 m0, {base+i*1024}\ns_add_u32 s46, s45, {i*64*3584}")
            a(f"buffer_load_dwordx4 v9, s[{srdr}:{srdr+3}], s46 offen {pol_w} lds")
    srd(52, 32, 1792 * 896)
    a(f"""
    v_lshrrev_b32 v10, 1, v0
    v_mul_u32_u24 v10, 896, v10
    v_and_b32 v11, 1, v0
    v_lshl_add_u32 v10, v11, 4, v10
    s_mul_i32 s45, s40, {224*896}
    s_lshl_b32 s46, s41, 5
    s_add_u32 s45, s45, s46
    """)
    for i in range(7):
        a(f"s_mov_b32 m0, {L_WD+i*1024}\ns_add_u32 s46, s45, {i*32*896}")
        a(f"buffer_load_dwordx4 v10, s[52:55], s46 offen {pol_w} lds")
    gmasks()
    get_tag()
    a(f"""
    v_mul_u32_u24 v9, {XNS}, v8
    v_lshl_add_u32 v9, v5, 4, v9
    v_add_u32 v9, {L_XN}, v9
    v_lshl_add_u32 v10, v5, 3, v7
    v_lshlrev_b32 v11, 4, v10
    v_and_b32 v12, 1, v8
    v_lshl_add_u32 v11, v12, 3, v11
    v_lshrrev_b32 v12, 1, v8
    v_mul_u32_u24 v12, {UPOFF}, v12
    v_add_u32 v11, v11, v12
    v_add_u32 v11, {L_WGU}, v11
    v_lshlrev_b32 v12, 5, v10
    v_lshl_add_u32 v12, v8, 3, v12
    v_add_u32 v12, {L_WD}, v12
    v_lshlrev_b32 v13, 10, v5
    v_lshrrev_b32 v14, 1, v6
    v_lshl_add_u32 v13, v14, 3, v13
    s_lshl_b32 s45, s40, 12
    s_add_u32 s45, s45, {HBUF}
    s_lshl_b32 s46, s41, 5
    s_add_u32 s46, s46, s45
    """)
    lds_wait(1, F_XN, 1, sleep=1)
    for t in range(14):
        a(f"ds_read_b128 {vr(AR+4*t,4)}, v9 offset:{t*64}")
        if t == 6: a("s_waitcnt lgkmcnt(0)")
    a("s_waitcnt vmcnt(7) lgkmcnt(0)")
    stamp(20)
    proj(14, AR, BR, 128, 11, 512, 64)
    select_by_g(14, 128, 129, 130, 131)
    round_bf16(14, 14)
    a(f"""
    v_mov_b32 v133, s{S_TAG}
    v_mov_b32_dpp v15, v14 row_ror:8 row_mask:0xf bank_mask:0xf
    v_max_f32 v14, 0, v14
    v_mul_f32 v14, v14, v15
    v_mov_b32_dpp v15, v14 quad_perm:[1,0,3,2] row_mask:0xf bank_mask:0xf
    v_cvt_pk_bf16_f32 v132, v14, v15
    s_mov_b32 exec_lo, 0x00550055
    s_mov_b32 exec_hi, 0x00550055
    buffer_store_dwordx2 v[132:133], v13, s[48:51], s46 offen sc1
    s_mov_b32 exec_lo, -1
    s_mov_b32 exec_hi, 0x00ffffff
    v_lshlrev_b32 v9, 4, v0
    v_lshlrev_b32 v10, 3, v0
    v_add_u32 v10, {L_HL}, v10
    """)
    stamp(21)
    poll([f"buffer_load_dwordx4 {vr(16+4*t,4)}, v9, s[48:51], s45 offen offset:{t*1024} sc1" for t in range(4)],
         [17, 19, 21, 23, 25, 27, 29, 31], sleep=1)
    for t in range(4):
        a(f"v_mov_b32 v{17+4*t}, v{18+4*t}\nds_write_b64 v10, {vr(16+4*t,2)} offset:{t*HLS}")
    a(f"""
    s_mov_b64 exec, -1
    v_mul_u32_u24 v9, {HLS}, v8
    v_lshl_add_u32 v9, v5, 4, v9
    v_add_u32 v9, {L_HL}, v9
    s_waitcnt lgkmcnt(0)
    """)
    for t in range(7):
        a(f"ds_read_b128 {vr(AR+4*t,4)}, v9 offset:{t*64}")
    a(f"""
    v_mul_u32_u24 v13, {56*512}, v5
    v_lshrrev_b32 v14, 3, v6
    v_lshl_add_u32 v13, v14, 9, v13
    v_and_b32 v14, 7, v6
    v_lshl_add_u32 v13, v14, 3, v13
    s_lshl_b32 s45, s41, 10
    s_lshl_b32 s46, s40, 6
    s_add_u32 s45, s45, s46
    s_add_u32 s45, s45, {YBUF}
    s_waitcnt lgkmcnt(0)
    """)
    stamp(22)
    proj(7, AR, BR, 128, 12, 1024, 128)
    select_by_g(132, 128, 129, 130, 131)
    a("buffer_store_dwordx2 v[132:133], v13, s[48:51], s45 offen sc1")
    stamp(23)
    flush_stamps()
    a("L_exit:\ns_endpgm")
    body = hazard.fix(a.text(), verbose=True)
    return kernel_file([(NAME + "_kernel", body, 136, 100, 136)], [(NAME + "_kernel", 256, 704, LDS_BYTES)])

if __name__ == "__main__":
    import argparse
    ap = argparse.ArgumentParser()
    ap.add_argument("out")
    ap.add_argument("--D", type=int, default=24)
    ap.add_argument("--pol_kv", default="nt")
    ap.add_argument("--pol_w", default="nt")
    ap.add_argument("--stamps", action="store_true")
    x = ap.parse_args()
    open(x.out, "w").write(gen(x.D, x.pol_kv.replace("def", ""), x.pol_w.replace("def", ""), x.stamps))
```

```python
import re
TRANS = ("v_exp_f32", "v_log_f32", "v_rcp_f32", "v_rsq_f32", "v_sqrt_f32", "v_sin_f32", "v_cos_f32", "v_rcp_iflag_f32")

def split_ops(s):
    out, depth, cur = [], 0, ""
    for ch in s:
        if ch == "[": depth += 1
        if ch == "]": depth -= 1
        if ch == "," and depth == 0:
            out.append(cur.strip()); cur = ""
        else:
            cur += ch
    if cur.strip(): out.append(cur.strip())
    return out

def regs(tok):
    tok = tok.strip()
    tok = tok.split()[0] if tok else tok
    tok = tok.lstrip("-").replace("abs(", "").replace(")", "").replace("|", "")
    m = re.fullmatch(r"([vsa])(\d+)", tok)
    if m: return {(m.group(1), int(m.group(2)))}
    m = re.fullmatch(r"([vsa])\[(\d+):(\d+)\]", tok)
    if m: return {(m.group(1), i) for i in range(int(m.group(2)), int(m.group(3)) + 1)}
    if tok in ("vcc", "vcc_lo", "vcc_hi"): return {("s", "vcc")}
    if tok == "m0": return {("s", "m0")}
    if tok in ("exec", "exec_lo", "exec_hi"): return {("s", "exec")}
    return set()

class I:
    def __init__(self, line):
        self.line = line
        t = line.split(";")[0].strip()
        self.label = t.endswith(":")
        self.empty = (not t) or self.label or t.startswith(".")
        self.w = set(); self.r = set(); self.kind = None; self.ws = 0
        if self.empty: return
        p = t.split(None, 1)
        self.mn = mn = p[0]
        rest = p[1] if len(p) > 1 else ""
        ops = split_ops(rest)
        self.ws = 1
        self.dpp = "_dpp" in mn or "row_" in rest or "quad_perm" in rest
        if mn == "s_nop":
            self.ws = int(ops[0], 0) + 1; self.kind = "salu"; return
        if mn.startswith("v_mfma"):
            self.kind = "mfma"
            self.passes = 4 if "16x16x32" in mn or "16x16x16" in mn else (8 if "32x32x16" in mn or "16x16x4_f32" in mn else 16)
            self.w = regs(ops[0]); self.a = regs(ops[1]) | regs(ops[2]); self.c = regs(ops[3]); self.r = self.a | self.c
        elif mn.startswith("v_"):
            self.kind = "valu"
            self.trans = any(mn.startswith(x) for x in TRANS)
            self.perm = mn.startswith("v_permlane")
            self.rl = mn.startswith("v_readlane") or mn.startswith("v_readfirstlane")
            if self.perm:
                self.w = regs(ops[0]) | regs(ops[1]); self.r = set(self.w)
            elif re.match(r"v_(add|sub|subrev|addc|subb)_co", mn):
                self.w = regs(ops[0]) | regs(ops[1]); self.r = set().union(*[regs(o) for o in ops[2:]])
            else:
                self.w = regs(ops[0]); self.r = set().union(*[regs(o) for o in ops[1:]]) if len(ops) > 1 else set()
                if mn.startswith(("v_fmac", "v_dot2c", "v_pk_fmac", "v_writelane")) or self.dpp: self.r |= self.w
                if mn.startswith("v_cndmask") and len(ops) == 3: self.r |= {("s", "vcc")}
        elif mn.startswith("ds_"):
            self.kind = "ds"
            if mn.startswith(("ds_read", "ds_bpermute", "ds_permute", "ds_swizzle")) or "_rtn" in mn:
                self.w = regs(ops[0]); self.r = set().union(*[regs(o) for o in ops[1:]])
            else:
                self.r = set().union(*[regs(o) for o in ops])
        elif mn.startswith(("buffer_", "global_")):
            self.kind = "vmem"
            self.lds = " lds" in (" " + rest) or "_lds_" in mn
            allr = [regs(o) for o in ops]
            if "load" in mn and not self.lds:
                self.w = allr[0]; self.r = set().union(*allr[1:])
            else:
                self.r = set().union(*allr) if allr else set()
            self.wide_store = None
            if "store" in mn and ("x3" in mn or "x4" in mn):
                self.wide_store = allr[0] if mn.startswith("buffer_") else allr[1]
            if self.lds: self.r |= {("s", "m0")}
        elif mn.startswith("s_"):
            self.kind = "salu"
            if mn.startswith(("s_cmp", "s_cbranch", "s_branch", "s_waitcnt", "s_barrier", "s_sleep", "s_setprio", "s_endpgm", "s_bitcmp")):
                self.r = set().union(*[regs(o) for o in ops]) if ops else set()
            else:
                self.w = regs(ops[0]); self.r = set().union(*[regs(o) for o in ops[1:]]) if len(ops) > 1 else set()

def need(p, c):
    n = 0
    vw = {x for x in p.w if x[0] in "va"}; sw = {x for x in p.w if x[0] == "s"}
    if p.kind == "valu":
        if c.kind == "valu":
            if c.dpp and vw & c.r: n = max(n, 2)
            if c.perm and vw & c.r: n = max(n, 2)
            if c.rl and vw & c.r: n = max(n, 1)
            if p.trans and not c.trans and vw & c.r: n = max(n, 1)
            if sw & c.r: n = max(n, 4 if c.rl or c.mn.startswith("v_writelane") else 2)
        if c.kind == "mfma" and vw & c.r: n = max(n, 2)
        if c.kind == "vmem" and sw & c.r: n = max(n, 5)
        if c.kind in ("vmem", "ds") and p.trans and vw & c.r: n = max(n, 1)
    if p.kind == "mfma":
        big = {4: 8, 8: 12, 16: 20}[p.passes]
        if c.kind == "mfma":
            if p.w & c.a: n = max(n, big)
            if p.w & c.c and not (p.w == c.c and p.passes == c.passes): n = max(n, big - 2)
            if p.w & c.w and p.w != c.c: n = max(n, big - 2)
        elif c.kind in ("valu", "ds", "vmem"):
            if p.w & (c.r | c.w): n = max(n, big)
            if c.kind == "valu" and p.c & c.w: n = max(n, {4: 3, 8: 7, 16: 15}[p.passes])
    if p.kind == "salu" and ("s", "m0") in p.w and c.kind == "vmem" and c.lds: n = max(n, 1)
    if p.kind == "vmem" and p.wide_store and c.kind in ("valu", "mfma") and p.wide_store & c.w: n = max(n, 2)
    if p.kind == "vmem" and p.wide_store and c.kind in ("ds", "vmem") and p.wide_store & c.w: n = max(n, 1)
    return n

def fix(text, verbose=False):
    out = []
    added = 0
    for line in text.split("\n"):
        c = I(line)
        if not c.empty:
            dist = 0; req = 0
            for p in reversed(out):
                if p.empty: continue
                if dist >= 20: break
                k = need(p, c) - dist
                if k > req: req = k
                dist += p.ws
            while req > 0:
                k = min(req, 16)
                out.append(I("    s_nop %d" % (k - 1))); added += 1
                req -= k
        out.append(c)
    if verbose: print("hazard nops added:", added)
    return "\n".join(i.line for i in out)
```

```python
import sys, re
sys.path.insert(0, "tools")
from asmlib import *
import gen1
base = gen1.gen()
def k2(kind, pol=""):
    a = Asm()
    a("s_cmp_ge_u32 s2, 256\ns_cbranch_scc1 L2_end")
    if kind != "empty":
        a(f"""
        s_load_dwordx4 s[4:7], s[0:1], 8
        s_load_dwordx2 s[8:9], s[0:1], 88
        v_lshrrev_b32 v1, 6, v0
        v_and_b32 v2, 63, v0
        s_nop 0
        v_readfirstlane_b32 s3, v1
        s_waitcnt lgkmcnt(0)
        s_mov_b32 s12, s{8 if kind=='ws' else 4}
        s_mov_b32 s13, s{9 if kind=='ws' else 5}
        s_mov_b32 s14, 0x4000000
        s_mov_b32 s15, 0x20000
        s_mov_b32 s16, s6
        s_mov_b32 s17, s7
        s_mov_b32 s18, 0x4000000
        s_mov_b32 s19, 0x20000
        v_lshlrev_b32 v3, 4, v2
        """)
        if kind == "ws":
            a("s_add_u32 s16, s8, 0x4000000\ns_addc_u32 s17, s9, 0\ns_add_u32 s12, s12, 0x800000\ns_addc_u32 s13, s13, 0")
        if kind in ("stream", "ws"):
            a(f"""
            s_and_b32 s20, s2, 31
            s_lshr_b32 s21, s2, 5
            s_lshl_b32 s20, s20, 21
            s_mul_i32 s21, s21, {192*1024}
            s_add_u32 s20, s20, s21
            s_lshl_b32 s21, s3, 10
            s_add_u32 s20, s20, s21
            s_mul_i32 s22, s2, 5
            s_and_b32 s22, s22, 15
            s_lshl_b32 s22, s22, 12
            """)
            n = 0
            for srd in (12, 16):
                for i in range(48):
                    a(f"s_add_u32 s23, s22, {i*4096}\ns_cmp_ge_u32 s23, {48*4096}\ns_cselect_b32 s24, {48*4096}, 0\ns_sub_u32 s23, s23, s24\ns_add_u32 s27, s20, s23")
                    a(f"buffer_load_dwordx4 {vr(8+4*(n%12),4)}, v3, s[{srd}:{srd+3}], s27 offen {pol}")
                    n += 1
                    if n >= 10: a("s_waitcnt vmcnt(9)")
            a("s_waitcnt vmcnt(0)")
        if kind == "chain":
            a("s_cmp_lg_u32 s2, 0\ns_cbranch_scc1 L2_end\ns_cmp_lg_u32 s3, 0\ns_cbranch_scc1 L2_end\ns_mov_b64 exec, 1\nv_mov_b32 v3, 0")
            for i in range(64):
                off = (i % 4) * (2 << 20) + (i // 4) * 66 * 1024 + 4096
                a(f"s_mov_b32 s27, {off}\nbuffer_load_dword v4, v3, s[12:15], s27 offen {pol}\ns_waitcnt vmcnt(0)")
    a("L2_end:\ns_endpgm")
    return a.text()
for name, kind, pol in (("empty", "empty", ""), ("stream_nt", "stream", "nt"), ("stream_def", "stream", ""), ("chain", "chain", "nt"), ("ws_nt", "ws", "nt")):
    t = base.replace("; @launch grid=(256,1,1) block=(704,1,1) lds=%d" % gen1.LDS_BYTES,
        "; @launch kernel=%s_kernel grid=(256,1,1) block=(704,1,1) lds=%d\n; @launch kernel=diag_kernel grid=(256,1,1) block=(256,1,1) lds=0" % (NAME, gen1.LDS_BYTES))
    t = t.replace('.section .rodata,"a"\n', ".globl diag_kernel\n.p2align 8\n.type diag_kernel,@function\ndiag_kernel:\n" + k2(kind, pol) + '.section .rodata,"a"\n')
    t += """.p2align 6
.amdhsa_kernel diag_kernel
  .amdhsa_next_free_vgpr 64
  .amdhsa_next_free_sgpr 64
  .amdhsa_accum_offset 64
  .amdhsa_group_segment_fixed_size 0
  .amdhsa_kernarg_size 96
  .amdhsa_user_sgpr_count 2
  .amdhsa_user_sgpr_kernarg_segment_ptr 1
  .amdhsa_system_sgpr_workgroup_id_x 1
.end_amdhsa_kernel
"""
    open(f"cand/dg_{name}.s", "w").write(t)
```

```python
import sys, struct
sys.path.insert(0, "tools")
from asmlib import *
import hazard

EPOCH = 0
RBUF = 0x1000; RB_B = 120 * 256
STB = 0x20000
XB = 0x24000
HINT = 0x28000
OBUF = 0x100000
FBUF = 0x200000
YBUF = 0x280000
WS_REC = 0x400000
STAMP_OFF = 128 << 20
L_A = 0; L_B = 65536; OS = 928
L_XN = 131072; XNS = 912
L_QL = L_XN + 4 * XNS; QLS = 544
L_SL = L_QL + 2 * QLS
L_PL = L_SL + 512; PLS = 288
L_AL = L_PL + 2 * PLS; ALS = 144
L_FAC = L_AL + 4 * ALS
L_FLAG = L_FAC + 128
LDS_BYTES = L_FLAG + 256
F_XN, F_Q, F_PROG, F_KC, F_TC, F_S, F_FAC, F_A, F_FAST = 0, 4, 8, 12, 16, 20, 24, 28, 32
LOG2E = 1.4426950408889634
def f2u(x): return "0x%08x" % struct.unpack("<I", struct.pack("<f", x))[0]
T_NONE, T_P, T_WO, T_DN = 0, 1, 2, 3
DEF = dict(lagQ=56, lagT=16, lagKb=20, lagKs=12, lagVb=28, lagVs=12, pol_kv="nt", pol_w="nt", stamps=0, rot=1, prefetch=1,
           nopoll=0, fast=1, qat=10, qat0=20, yat=32, outsc1=0, rsleep=16, warmat=2)

def gen(**kw):
    o = dict(DEF); o.update(kw)
    stamps = o["stamps"]; NST = 44; pol_kv = o["pol_kv"]; pol_w = o["pol_w"]
    a = Asm()
    S_TAG = 15
    used = []
    def stamp(k):
        if stamps:
            a(f"s_memrealtime s[{72+2*len(used)}:{73+2*len(used)}]"); used.append(k)
    def flush_stamps():
        if stamps and used:
            a(f"s_waitcnt lgkmcnt(0)\ns_add_u32 s10, s38, {STAMP_OFF}\ns_addc_u32 s11, s39, 0\ns_mul_i32 s12, s2, {NST*8}\nv_mov_b32 v1, s12\ns_mov_b64 exec, 1")
            for i, k in enumerate(used):
                a(f"v_mov_b32 v2, s{72+2*i}\nv_mov_b32 v3, s{73+2*i}\nglobal_store_dwordx2 v1, v[2:3], s[10:11] offset:{8*k}\ns_nop 1")
        used.clear()
    def srd(reg, ptr, size):
        a(f"s_mov_b32 s{reg}, s{ptr}\ns_mov_b32 s{reg+1}, s{ptr+1}\ns_mov_b32 s{reg+2}, {size}\ns_mov_b32 s{reg+3}, 0x20000")
    def lds_wait(off, need, sleep=0):
        l = a.label("lw"); d = a.label("lwd")
        a(f"s_mov_b32 s12, 0x20000\n{l}:\nds_read_b32 v2, v1 offset:{off}\ns_waitcnt lgkmcnt(0)\nv_readfirstlane_b32 s13, v2\ns_cmp_ge_i32 s13, {need}\ns_cbranch_scc1 {d}")
        if sleep: a(f"s_sleep {sleep}")
        a(f"s_sub_u32 s12, s12, 1\ns_cbranch_scc0 {l}\n{d}:")
    def sig_set(off, val):
        a(f"v_mov_b32 v2, {val}\nds_write_b32 v1, v2 offset:{off}")
    def sig_add(off):
        a(f"s_mov_b64 exec, 1\nv_mov_b32 v2, 1\nds_add_u32 v1, v2 offset:{off}\ns_mov_b64 exec, -1")
    def get_tag():
        a(f"s_waitcnt lgkmcnt(0)\ns_mul_i32 s{S_TAG}, s14, 0x9E3779B1\ns_add_u32 s{S_TAG}, s{S_TAG}, 0x632BE5AB")
    def poll(loads, tagregs, sleep=0, pre=None):
        if o["nopoll"]: return
        l = a.label("pl"); d = a.label("pld")
        a(f"s_mov_b32 s12, 0x2000\n{l}:")
        for x in loads: a(x)
        a("s_waitcnt vmcnt(0)")
        if pre: a(pre)
        a(f"v_cmp_ne_u32 vcc, s{S_TAG}, v{tagregs[0]}")
        for t in tagregs[1:]:
            a(f"v_cmp_ne_u32 s[10:11], s{S_TAG}, v{t}\ns_or_b64 vcc, vcc, s[10:11]")
        a(f"s_cbranch_scc0 {d}" if len(tagregs) > 1 else f"s_cbranch_vccz {d}")
        if sleep: a(f"s_sleep {sleep}")
        a(f"s_sub_u32 s12, s12, 1\ns_cbranch_scc0 {l}\n{d}:")
    DPP = "row_mask:0xf bank_mask:0xf"
    def red(op, vs, steps, tmps=None):
        for st in steps:
            if st in ("x16", "x32"):
                sw = "v_permlane16_swap_b32" if st == "x16" else "v_permlane32_swap_b32"
                for v, t in zip(vs, tmps): a(f"v_mov_b32 v{t}, v{v}")
                for v, t in zip(vs, tmps): a(f"{sw} v{v}, v{t}")
                for v, t in zip(vs, tmps): a(f"{op} v{v}, v{v}, v{t}")
            else:
                for v in vs: a(f"{op}_dpp v{v}, v{v}, v{v} {st} {DPP}")
    ROR = lambda *k: ["row_ror:%d" % i for i in k]
    def round_bf16(dst, src):
        a(f"v_cvt_pk_bf16_f32 v{dst}, v{src}, v{src}\nv_and_b32 v{dst}, 0xffff0000, v{dst}")
    def e4_tags(bases, dst):
        s = ""
        for i, b in enumerate(bases): s += f"v_perm_b32 v{dst+i}, v{b+1}, v{b}, s4\n"
        for i, b in enumerate(bases): s += f"v_perm_b32 v{dst+i}, v{b+2}, v{dst+i}, s5\n"
        for i, b in enumerate(bases): s += f"v_perm_b32 v{dst+i}, v{b+3}, v{dst+i}, s6\n"
        return s
    def red4(b):
        a(f"""
        v_permlane32_swap_b32 v{b}, v{b+1}
        v_permlane32_swap_b32 v{b+2}, v{b+3}
        v_add_f32 v{b}, v{b}, v{b+1}
        v_add_f32 v{b+2}, v{b+2}, v{b+3}
        v_permlane16_swap_b32 v{b}, v{b+2}
        v_add_f32 v{b}, v{b}, v{b+2}
        v_add_f32_dpp v{b}, v{b}, v{b} row_ror:4 {DPP}
        v_add_f32_dpp v{b}, v{b}, v{b} row_ror:8 {DPP}
        """)

    a("s_cmp_ge_u32 s2, 256\ns_cbranch_scc1 L_exit")
    a("s_load_dwordx16 s[16:31], s[0:1], 0\ns_load_dwordx8 s[32:39], s[0:1], 64")
    if stamps: a("s_memrealtime s[70:71]")
    if o["prefetch"]:
        a(f"""
        s_getpc_b64 s[4:5]
        L_pc:
        s_bfe_u32 s6, s2, 0x20003
        s_lshl_b32 s6, s6, 5
        v_add_u32 v1, s6, v0
        v_lshlrev_b32 v1, 7, v1
        v_min_u32 v1, L_codeend-L_pc-4, v1
        v_cmp_gt_u32 vcc, 32, v0
        s_and_saveexec_b64 s[8:9], vcc
        s_cbranch_execz L_nopf
        global_load_dword v3, v1, s[4:5]
        L_nopf:
        s_mov_b64 exec, s[8:9]
        """)
    a(f"""
    v_lshrrev_b32 v4, 6, v0
    v_and_b32 v0, 63, v0
    s_and_b32 s40, s2, 7          ; hkv
    v_readfirstlane_b32 s3, v4
    s_lshr_b32 s41, s2, 3         ; j
    s_lshr_b32 s42, s2, 6         ; b
    s_and_b32 s43, s41, 7         ; c
    s_lshl_b32 s61, s40, 3
    s_add_u32 s61, s61, s43
    s_add_u32 s60, s42, 1
    s_cmp_lt_u32 s42, 2
    s_cbranch_scc1 L_typed
    s_sub_u32 s61, s2, 64
    s_mov_b32 s60, {T_P}
    s_cmp_lt_u32 s61, 120
    s_cbranch_scc1 L_typed
    s_sub_u32 s61, s61, 120
    s_cmp_lt_u32 s61, 28
    s_cselect_b32 s60, {T_DN}, {T_NONE}
    L_typed:
    s_cmp_eq_u32 s60, {T_P}
    s_cselect_b32 s64, 14, 0
    s_cmp_ge_u32 s60, {T_WO}
    s_cselect_b32 s64, 16, s64
    v_mov_b32 v1, {L_FLAG}
    v_lshrrev_b32 v5, 4, v0       ; g
    """)
    a("s_lshl_b32 s62, s43, 4" if o["rot"] else "s_mov_b32 s62, 0")
    a("s_cmp_lg_u32 s3, 0\ns_cbranch_scc1 L_notloader")
    a.c("======== loader wave (wave 0)")
    lagQ, lagT, lagKb, lagKs, lagVb, lagVs = (o[k] for k in ("lagQ", "lagT", "lagKb", "lagKs", "lagVb", "lagVs"))
    def pace(big, small):
        if big != small:
            l = a.label("big")
            a(f"s_cbranch_vccnz {l}\ns_waitcnt vmcnt({small})\n{l}:")
        a(f"s_waitcnt vmcnt({big})\ns_sub_u32 s7, s4, s8")
        sig_set(F_PROG, "s7")
    a(f"""
    s_setprio 2
    v_lshl_add_u32 v4, v0, 2, v1
    v_mov_b32 v2, 0
    ds_write_b32 v4, v2
    v_and_b32 v9, 7, v0
    v_and_b32 v10, 1, v5
    v_lshlrev_b32 v10, 1, v10
    v_xor_b32 v10, v9, v10
    v_lshlrev_b32 v10, 4, v10
    v_lshrrev_b32 v11, 3, v0
    s_mov_b32 s4, 0
    s_mov_b32 s55, 0x20000
    s_mov_b32 m0, {L_B}
    s_cmp_eq_u32 s60, {T_P}
    s_cbranch_scc0 L_ld_notp
    s_cmp_lt_u32 s61, 64
    s_cselect_b64 vcc, -1, 0
    s_cselect_b32 s8, {lagQ//4}, {lagT//4}
    s_movk_i32 s45, 3584
    s_cselect_b32 s45, 8192, s45
    s_cselect_b32 s46, 0, 64
    s_mul_i32 s54, s45, 448
    v_mul_lo_u32 v12, s45, v11
    v_add_u32 v12, v12, v10
    v_xor_b32 v13, 64, v12
    s_lshl_b32 s45, s45, 3
    s_waitcnt lgkmcnt(0)
    s_barrier
    s_cmp_lt_u32 s61, 64
    s_cselect_b32 s52, s22, s28
    s_cselect_b32 s53, s23, s29
    s_cmp_lt_u32 s61, 92
    s_cselect_b32 s52, s52, s30
    s_cselect_b32 s53, s53, s31
    s_cselect_b32 s46, s46, 92
    s_sub_u32 s46, s61, s46
    s_lshl_b32 s46, s46, 7
    L_ld_p:
    s_add_u32 s4, s4, 1
    """)
    for i in range(4):
        a(f"buffer_load_dwordx4 v{12+(i&1)}, s[52:55], s46 offen {pol_w} lds\ns_add_u32 m0, m0, 1024\ns_add_u32 s46, s46, s45")
    pace(lagQ, lagT)
    a(f"""
    s_cmp_lt_u32 s4, 14
    s_cbranch_scc1 L_ld_p
    s_branch L_ld_k
    L_ld_notp:
    s_mul_i32 s63, s61, {64*896}
    v_lshlrev_b32 v14, 4, v0
    s_mov_b32 s8, {lagT//4}
    s_mov_b32 s54, {4096*896}
    s_waitcnt lgkmcnt(0)
    s_barrier
    s_cmp_eq_u32 s64, 16
    s_cbranch_scc0 L_ld_k
    s_cmp_eq_u32 s60, {T_DN}
    s_cselect_b32 s52, s32, s24
    s_cselect_b32 s53, s33, s25
    s_cselect_b32 s54, {1792*896}, s54
    s_mov_b32 exec_hi, 0x00ffffff
    L_ld_o:
    s_add_u32 s4, s4, 1
    """)
    for i in range(4):
        a(f"buffer_load_dwordx4 v14, s[52:55], s63 offen {pol_w} lds\ns_add_u32 m0, m0, {OS}\ns_add_u32 s63, s63, 896")
    pace(lagT, lagT)
    a(f"""
    s_cmp_lt_u32 s4, 16
    s_cbranch_scc1 L_ld_o
    s_mov_b64 exec, -1
    L_ld_k:
    """)
    if stamps:
        for i in range(13): a(f"s_mov_b64 s[{72+2*i}:{73+2*i}], 0")
    stamp(11)
    a(f"""
    s_mov_b32 s52, s18
    s_mov_b32 s53, s19
    s_mov_b32 s54, 0x4000000
    v_xor_b32 v12, v9, v5
    v_lshlrev_b32 v12, 4, v12
    v_lshl_add_u32 v12, v11, 9, v12       ; K swizzle
    v_xor_b32 v13, 64, v12
    s_lshl_b32 s45, s42, 3
    s_add_u32 s45, s45, s40
    s_lshl_b32 s45, s45, 21
    s_lshl_b32 s46, s43, 16
    s_add_u32 s45, s45, s46
    s_add_u32 s45, s45, {3072*512}
    s_cmp_lg_u32 s64, 0
    s_cselect_b64 vcc, -1, 0
    s_cselect_b32 s8, {lagKb//4}, {lagKs//4}
    """)
    def kv(lab, base, big, small):
        a(f"""
        s_mov_b32 s9, {base}
        s_mov_b32 s47, s62
        {lab}:
        s_lshl_b32 s6, s47, 9
        s_add_u32 s6, s6, s45
        s_mov_b32 m0, s9
        """)
        for par in range(2):
            a("s_add_u32 s4, s4, 1")
            for q in range(4):
                a(f"buffer_load_dwordx4 v{12+par}, s[52:55], s6 offen offset:{q*128} {pol_kv} lds")
                if par == 0 or q < 3: a(f"s_add_u32 m0, m0, {896 if q < 3 else 4096-3*896}")
                if q < 3: a("s_nop 0")
            pace(big, small)
            if par == 0: a("s_add_u32 s6, s6, 4096")
        a(f"""
        s_add_u32 s47, s47, 16
        s_and_b32 s47, s47, 127
        s_add_u32 s9, s9, 8192
        s_cmp_lt_u32 s9, {base+65536}
        s_cbranch_scc1 {lab}
        """)
    kv("L_k_loop", L_A, lagKb, lagKs)
    stamp(12)
    a(f"""
    s_mov_b32 s52, s20
    s_mov_b32 s53, s21
    v_lshl_add_u32 v12, v11, 9, v10
    v_xor_b32 v13, 64, v12
    s_cmp_eq_u32 s64, 14
    s_cselect_b32 s46, 4, 0
    s_cmp_eq_u32 s64, 16
    s_cselect_b32 s46, 7, s46
    s_cmp_lg_u32 s64, 0
    s_cselect_b32 s8, {lagVb//4}, {lagVs//4}
    """)
    lds_wait(F_TC, "s46")
    kv("L_v_loop", L_B, lagVb, lagVs)
    stamp(14)
    for k in range(lagVb // 4 - 1, -1, -1):
        a(f"s_waitcnt vmcnt({4*k})\ns_sub_u32 s6, s4, {k}")
        sig_set(F_PROG, "s6")
    stamp(15)
    if stamps: a(f"s_cmp_eq_u32 s60, {T_WO}\ns_cbranch_scc1 L_exit")
    flush_stamps()
    a("s_endpgm")
    a(f"""
    L_notloader:
    v_and_b32 v6, 15, v0          ; n
    v_bfe_u32 v7, v0, 2, 2        ; r
    v_and_b32 v8, 3, v0           ; cc
    s_sub_u32 s3, s3, 2
    s_waitcnt lgkmcnt(0)
    s_barrier
    s_load_dword s14, s[38:39], {EPOCH}
    """)
    if stamps:
        for i in range(13): a(f"s_mov_b64 s[{72+2*i}:{73+2*i}], 0")
    srd(48, 38, WS_REC)
    a("s_cmp_eq_u32 s3, -1\ns_cbranch_scc1 L_helper")

    a.c("======== attention waves 0..7")
    if stamps:
        a("s_mov_b64 s[72:73], s[70:71]"); used.append(0)
    KR = 16; QR = 48; WB = 104
    get_tag()
    a(f"""
    v_and_b32 v10, 1, v5
    v_lshrrev_b32 v11, 1, v7
    v_lshl_add_u32 v10, v10, 1, v11       ; f = ((r>>1)&1) | ((g&1)<<1)
    v_mov_b32 v102, 0
    s_cmp_eq_u32 s60, {T_P}
    s_cbranch_scc1 L_pjob
    s_cmp_lg_u32 s64, 16
    s_cbranch_scc1 L_k
    v_lshl_add_u32 v100, v5, 2, v7
    v_mul_u32_u24 v100, {OS}, v100
    v_lshl_add_u32 v100, v8, 3, v100
    s_lshl_b32 s46, s3, 7
    s_add_u32 s46, s46, {L_B}
    v_add_u32 v100, s46, v100
    v_mul_u32_u24 v101, {ALS}, v7
    v_lshl_add_u32 v101, v5, 4, v101
    v_add_u32 v101, {L_AL}, v101
    v_mul_u32_u24 v102, 28, v5
    v_add_u32 v102, v102, v7
    v_lshlrev_b32 v102, 12, v102
    v_lshl_add_u32 v102, v8, 4, v102
    v_mov_b32 v103, s{S_TAG}
    s_lshl_b32 s46, s3, 14
    s_lshl_b32 s47, s61, 6
    s_add_u32 s59, s46, s47
    s_cmp_eq_u32 s60, {T_DN}
    s_cselect_b32 s46, {YBUF-FBUF}, 0
    s_add_u32 s59, s59, s46
    s_add_u32 s59, s59, {FBUF}
    s_mov_b32 s4, 0x07060500
    s_mov_b32 s5, 0x07060501
    s_mov_b32 s6, 0x07060502
    s_mov_b32 s7, 0x07060503
    """)
    def wread(vaddr, thr0):
        for ks in range(2):
            lds_wait(F_PROG, thr0 + 8 * (ks + 1), sleep=0)
            for jt in range(4):
                for half in range(2):
                    a(f"ds_read_b64_tr_b16 {vr(WB+16*ks+4*jt+2*half,2)}, v{vaddr} offset:{ks*32*OS+half*16*OS+jt*32}")
    a.c("---- early out tile: operands to registers")
    a(f"s_cmp_eq_u32 s3, 7\ns_cbranch_scc1 L_k")
    wread(100, 0)
    a("s_waitcnt lgkmcnt(0)")
    sig_add(F_TC)
    a("s_branch L_k\nL_pjob:\ns_cmp_lt_u32 s3, 4\ns_cbranch_scc0 L_k")
    a.c("---- projection job: xn[4x448] x W[448x16] per wave")
    AR = 48; BR = 104
    a(f"""
    v_mul_u32_u24 v11, {XNS}, v7
    v_lshl_add_u32 v11, v5, 4, v11
    v_add_u32 v11, {L_XN}, v11
    v_lshl_add_u32 v12, v5, 3, v7
    v_lshlrev_b32 v12, 7, v12
    v_xor_b32 v13, s3, v10
    v_lshl_add_u32 v12, v13, 5, v12
    v_lshl_add_u32 v12, v8, 3, v12
    v_add_u32 v12, {L_B}, v12
    v_mul_u32_u24 v13, {RB_B}, v5
    v_lshrrev_b32 v14, 1, v6
    v_lshl_add_u32 v13, v14, 3, v13
    s_lshl_b32 s45, s61, 8
    s_lshl_b32 s46, s3, 6
    s_add_u32 s45, s45, s46
    s_add_u32 s45, s45, {RBUF}
    v_mov_b32 v15, s{S_TAG}
    """)
    lds_wait(F_XN, 1, sleep=1)
    for t in range(14):
        a(f"ds_read_b128 {vr(AR+4*t,4)}, v11 offset:{t*64}")
    for t0 in (0, 7):
        lds_wait(F_PROG, 7 if t0 == 0 else 14)
        if t0: stamp(2)
        for t in range(7):
            a(f"ds_read_b64_tr_b16 {vr(BR+4*t,2)}, v12 offset:{(t0+t)*4096}")
            a(f"ds_read_b64_tr_b16 {vr(BR+4*t+2,2)}, v12 offset:{(t0+t)*4096+512}")
        for t in range(7):
            a(f"s_waitcnt lgkmcnt({2*(6-t)})")
            a(f"v_mfma_f32_16x16x32_bf16 v[132:135], {vr(AR+4*(t0+t),4)}, {vr(BR+4*t,4)}, {'0' if t0+t==0 else 'v[132:135]'}")
    a(f"""
    v_mov_b32_dpp v14, v132 quad_perm:[1,0,3,2] {DPP}
    v_cvt_pk_bf16_f32 v14, v132, v14
    s_mov_b32 exec_lo, 0x55555555
    s_mov_b32 exec_hi, 0x55555555
    buffer_store_dwordx2 v[14:15], v13, s[48:51], s45 offen sc1
    """)
    sig_add(F_TC)
    stamp(3)
    a("L_k:")
    a.c("---- K fragments, scores")
    a(f"""
    s_lshl_b32 s63, s3, 4
    s_add_u32 s63, s63, s62
    s_and_b32 s63, s63, 127
    v_lshrrev_b32 v11, 1, v6
    v_xor_b32 v11, v11, v5
    v_lshlrev_b32 v11, 4, v11
    v_and_b32 v12, 7, v6
    v_lshl_add_u32 v11, v12, 7, v11
    v_lshrrev_b32 v12, 3, v6
    v_lshl_add_u32 v11, v12, 12, v11
    s_lshl_b32 s46, s3, 13
    v_add_u32 v11, s46, v11
    v_xor_b32 v12, 64, v11
    s_lshl_b32 s46, s3, 1
    s_add_u32 s46, s46, s64
    s_add_u32 s46, s46, 2
    """)
    lds_wait(F_PROG, "s46", sleep=1)
    for t in range(8):
        a(f"ds_read_b128 {vr(KR+4*t,4)}, v{11+(t&1)} offset:{(t>>1)*1024}")
    a(f"""
    v_and_b32 v11, 1, v0
    v_lshlrev_b32 v12, 8, v11
    v_lshl_add_u32 v12, v5, 3, v12
    s_lshl_b32 s46, s63, 1
    s_add_u32 s46, s46, {L_SL}
    v_add_u32 v12, s46, v12
    v_mul_u32_u24 v11, {QLS}, v11
    v_lshl_add_u32 v11, v5, 4, v11
    v_add_u32 v11, {L_QL}, v11
    v_lshlrev_b32 v13, 3, v0
    v_add_u32 v13, {L_SL}, v13
    v_lshrrev_b32 v14, 5, v0
    v_lshlrev_b32 v15, 5, v14
    v_add_u32 v15, v15, v13
    v_add_u32 v15, {L_PL-L_SL}, v15
    s_mov_b32 s57, {f2u(LOG2E/16)}
    s_waitcnt lgkmcnt(0)
    """)
    stamp(1)
    a(f"s_cmp_eq_u32 s60, {T_DN}\ns_cbranch_scc1 L_ojob\nL_q:")
    lds_wait(F_Q, 1, sleep=1)
    stamp(4)
    for t in range(8):
        a(f"ds_read_b128 {vr(QR+4*t,4)}, v11 offset:{t*64}")
    a(f"ds_read_b32 v3, v1 offset:{F_FAST}")
    for t in range(8):
        a(f"s_waitcnt lgkmcnt({8-t})")
        a(f"v_mfma_f32_16x16x32_bf16 v[80:83], {vr(KR+4*t,4)}, {vr(QR+4*t,4)}, {'0' if t==0 else 'v[80:83]'}")
    a(f"""
    v_cvt_pk_bf16_f32 v84, v80, v81
    v_cvt_pk_bf16_f32 v85, v82, v83
    s_mov_b32 exec_lo, 0x00030003
    s_mov_b32 exec_hi, 0x00030003
    ds_write_b64 v12, v[84:85]
    s_waitcnt lgkmcnt(0)
    v_readfirstlane_b32 s65, v3
    """)
    sig_add(F_S)
    stamp(5)
    if stamps:
        k = len(used)
        a(f"s_mul_i32 s46, s65, 100\ns_add_u32 s{72+2*k}, s70, s46\ns_addc_u32 s{73+2*k}, s71, 0"); used.append(24)
    a(f"""
    v_lshrrev_b32 v32, 3, v6
    v_mul_u32_u24 v32, {PLS}, v32
    v_add_u32 v32, {L_PL}, v32
    s_lshl_b32 s46, s62, 1
    v_lshl_add_u32 v33, v5, 4, s46
    """)
    for t in range(4):
        a(f"v_add_u32 v{34+t}, {64*t}, v33\nv_and_b32 v{34+t}, 255, v{34+t}\nv_add_u32 v{34+t}, v{34+t}, v32")
    a(f"""
    v_lshlrev_b32 v38, 12, v5
    v_lshl_add_u32 v38, v7, 7, v38
    v_lshl_add_u32 v38, v8, 3, v38
    s_lshr_b32 s46, s3, 1
    s_lshl_b32 s46, s46, 10
    s_add_u32 s46, s46, {L_B}
    v_add_u32 v38, s46, v38
    s_and_b32 s46, s3, 1
    s_lshl_b32 s46, s46, 1
    v_xor_b32 v39, s46, v10
    v_xor_b32 v40, 1, v39
    v_lshl_add_u32 v39, v39, 5, v38
    v_lshl_add_u32 v40, v40, 5, v38
    v_lshrrev_b32 v41, 1, v5
    v_lshlrev_b32 v41, 16, v41
    v_lshl_add_u32 v41, v6, 4, v41
    s_lshl_b32 s46, s40, 3
    s_lshr_b32 s47, s3, 1
    s_add_u32 s46, s46, s47
    s_lshl_b32 s46, s46, 14
    s_lshl_b32 s47, s41, 9
    s_add_u32 s46, s46, s47
    s_and_b32 s47, s3, 1
    s_lshl_b32 s47, s47, 8
    s_add_u32 s46, s46, s47
    s_add_u32 s58, s46, {OBUF}
    """)
    lds_wait(F_S, 8)
    a(f"""
    ds_read_b64 v[88:89], v13
    s_waitcnt lgkmcnt(0)
    v_lshlrev_b32 v92, 16, v88
    v_and_b32 v93, 0xffff0000, v88
    v_lshlrev_b32 v94, 16, v89
    v_and_b32 v95, 0xffff0000, v89
    v_max_f32 v96, v92, v93
    v_max3_f32 v96, v96, v94, v95
    """)
    red("v_max_f32", [96], ROR(8, 4, 2, 1) + ["x16"], [97])
    for i in range(4): a(f"v_sub_f32 v{92+i}, v{92+i}, v96")
    for i in range(4): a(f"v_mul_f32 v{92+i}, s57, v{92+i}")
    for i in range(4): a(f"v_exp_f32 v{92+i}, v{92+i}")
    a(f"""
    v_add_f32 v98, v92, v93
    v_add_f32 v99, v94, v95
    v_cvt_pk_bf16_f32 v92, v92, v93
    v_cvt_pk_bf16_f32 v93, v94, v95
    v_add_f32 v98, v98, v99
    ds_write_b64 v15, v[92:93]
    s_cmp_lg_u32 s3, 0
    s_cbranch_scc1 L_nostat
    """)
    red("v_add_f32", [98], ROR(8, 4, 2, 1) + ["x16"], [97])
    a(f"""
    v_mov_b32 v97, s{S_TAG}
    v_mov_b32 v99, s{S_TAG}
    v_lshlrev_b32 v14, 9, v14
    s_lshl_b32 s46, s40, 10
    s_lshl_b32 s47, s41, 4
    s_add_u32 s46, s46, s47
    s_add_u32 s46, s46, {STB}
    s_mov_b32 exec_lo, 1
    s_mov_b32 exec_hi, 1
    s_cmp_eq_u32 s65, 0
    s_cbranch_scc1 L_stslow
    buffer_store_dwordx4 v[96:99], v14, s[48:51], s46 offen
    s_branch L_ststored
    L_stslow:
    buffer_store_dwordx4 v[96:99], v14, s[48:51], s46 offen sc1
    L_ststored:
    s_mov_b64 exec, -1
    L_nostat:
    s_waitcnt lgkmcnt(0)
    """)
    PR = 16
    for t in range(4):
        a(f"ds_read_b128 {vr(PR+4*t,4)}, v{34+t}")
    stamp(6)
    a(f"""
    v_mov_b32 v89, s{S_TAG}
    v_mov_b32 v91, s{S_TAG}
    v_lshlrev_b32 v11, 9, v5
    v_lshl_add_u32 v11, v6, 4, v11
    s_lshl_b32 s45, s61, 14
    s_lshr_b32 s46, s3, 1
    s_lshl_b32 s47, s46, 12
    s_add_u32 s45, s45, s47
    s_and_b32 s47, s3, 1
    s_lshl_b32 s47, s47, 8
    s_add_u32 s45, s45, s47
    s_add_u32 s66, s45, {OBUF}
    s_lshr_b32 s45, s61, 2
    s_lshl_b32 s45, s45, 9
    s_lshl_b32 s47, s46, 7
    s_add_u32 s45, s45, s47
    s_add_u32 s67, s45, {STB}
    v_lshlrev_b32 v12, 4, v5
    s_mul_i32 s46, s46, {ALS}
    s_and_b32 s47, s3, 1
    s_lshl_b32 s47, s47, 6
    s_add_u32 s46, s46, s47
    s_add_u32 s46, s46, {L_AL}
    v_lshlrev_b32 v13, 4, v7
    v_lshl_add_u32 v13, v8, 1, v13
    v_lshrrev_b32 v14, 5, v0
    v_lshl_add_u32 v13, v14, 3, v13
    v_add_u32 v13, s46, v13
    s_add_u32 s56, s64, 20
    """)
    STL = ["buffer_load_dwordx4 v[48:51], v12, s[48:51], s67 offen sc1", "buffer_load_dwordx4 v[52:55], v12, s[48:51], s67 offen offset:64 sc1"]
    for t in range(4):
        if t == o["warmat"] and not o["nopoll"]:
            a(f"s_cmp_eq_u32 s60, {T_WO}\ns_cbranch_scc0 L_nowarm\nbuffer_load_dword v58, v11, s[48:51], s66 offen sc1\nbuffer_load_dword v59, v11, s[48:51], s66 offen offset:2048 sc1\nL_nowarm:")
        if t == 3 and not o["nopoll"]:
            a(f"s_cmp_eq_u32 s60, {T_WO}\ns_cbranch_scc0 L_nostl\n" + "\n".join(STL) + "\nL_nostl:")
        lds_wait(F_PROG, "s56", sleep=1 if t < 3 else 0)
        a(f"""
        ds_read_b64_tr_b16 v[92:93], v39 offset:{t*16384}
        ds_read_b64_tr_b16 v[94:95], v39 offset:{t*16384+512}
        ds_read_b64_tr_b16 v[96:97], v40 offset:{t*16384}
        ds_read_b64_tr_b16 v[98:99], v40 offset:{t*16384+512}
        s_add_u32 s56, s56, 4
        s_waitcnt lgkmcnt(2)
        v_mfma_f32_16x16x32_bf16 v[80:83], {vr(PR+4*t,4)}, v[92:95], {'0' if t==0 else 'v[80:83]'}
        s_waitcnt lgkmcnt(0)
        v_mfma_f32_16x16x32_bf16 v[84:87], {vr(PR+4*t,4)}, v[96:99], {'0' if t==0 else 'v[84:87]'}
        """)
    a(f"""
    s_mov_b32 exec_lo, 0xffff
    s_mov_b32 exec_hi, 0xffff
    s_cmp_eq_u32 s65, 0
    v_mov_b32 v88, v80
    v_mov_b32 v90, v84
    s_cbranch_scc1 L_oslow
    buffer_store_dwordx4 v[88:91], v41, s[48:51], s58 offen
    s_branch L_ostored
    L_oslow:
    buffer_store_dwordx4 v[88:91], v41, s[48:51], s58 offen sc1
    L_ostored:
    s_mov_b64 exec, -1
    """)
    stamp(7)
    a(f"s_cmp_eq_u32 s60, {T_WO}\ns_cbranch_scc0 L_adone")
    a.c("---- combine the 8 key chunks for this wo tile (loader and helper have ended: s_barrier joins the 8 waves)")
    BL = "buffer_load_dwordx4 v[92:95], v11, s[48:51], s66 offen sc1\nbuffer_load_dwordx4 v[96:99], v11, s[48:51], s66 offen offset:2048 sc1"
    def chk(regs):
        a(f"v_cmp_ne_u32 vcc, s{S_TAG}, v{regs[0]}")
        for t in regs[1:]: a(f"v_cmp_ne_u32 s[10:11], s{S_TAG}, v{t}\ns_or_b64 vcc, vcc, s[10:11]")
    if not o["nopoll"]:
        a(BL + "\ns_waitcnt vmcnt(3)")
        chk([49, 51, 53, 55])
        a("s_cbranch_scc1 L_stretry\nL_stok:")
    a(f"""
    v_max_f32 v56, v48, v52
    """)
    red("v_max_f32", [56], ["x16", "x32"], [57])
    a(f"""
    v_sub_f32 v14, v48, v56
    v_sub_f32 v15, v52, v56
    v_mul_f32 v14, s57, v14
    v_mul_f32 v15, s57, v15
    v_exp_f32 v14, v14
    v_exp_f32 v15, v15
    s_mov_b32 s12, 0x2000
    v_mul_f32 v56, v14, v50
    v_fmac_f32 v56, v15, v54
    """)
    red("v_add_f32", [56], ["x16", "x32"], [57])
    a("v_rcp_f32 v56, v56\nv_mul_f32 v14, v14, v56\nv_mul_f32 v15, v15, v56")
    if not o["nopoll"]:
        a("L_bchk:\ns_waitcnt vmcnt(0)")
        chk([93, 95, 97, 99])
        a("s_cbranch_scc0 L_bok\n" + BL + "\ns_sub_u32 s12, s12, 1\ns_cbranch_scc0 L_bchk\nL_bok:")
    stamp(8)
    a(f"""
    v_mul_f32 v92, v92, v14
    v_mul_f32 v94, v94, v14
    v_fmac_f32 v92, v96, v15
    v_fmac_f32 v94, v98, v15
    v_permlane32_swap_b32 v92, v94
    v_add_f32 v92, v92, v94
    """)
    red("v_add_f32", [92], ["x16"], [93])
    a(f"""
    v_cvt_pk_bf16_f32 v92, v92, v92
    ds_write_b16 v13, v92
    s_waitcnt lgkmcnt(0)
    s_barrier
    s_cmp_eq_u32 s3, 7
    s_cbranch_scc1 L_adone
    L_ojob2:
    """)
    a.c("---- out job: a[4x64] x W[64x448], 64 columns per wave")
    stamp(9)
    a("ds_read_b128 v[92:95], v101\nds_read_b128 v[96:99], v101 offset:64\ns_waitcnt lgkmcnt(1)")
    for jt in range(4):
        a(f"v_mfma_f32_16x16x32_bf16 {vr(48+4*jt,4)}, v[92:95], {vr(WB+4*jt,4)}, 0")
    a("s_waitcnt lgkmcnt(0)")
    for jt in range(4):
        a(f"v_mfma_f32_16x16x32_bf16 {vr(48+4*jt,4)}, v[96:99], {vr(WB+16+4*jt,4)}, {vr(48+4*jt,4)}")
    for jt in range(4):
        a(f"v_perm_b32 v{64+jt}, v{48+4*jt}, v103, s{4+jt}")
    a("buffer_store_dwordx4 v[64:67], v102, s[48:51], s59 offen sc1")
    stamp(10)
    a(f"s_cmp_eq_u32 s60, {T_DN}\ns_cbranch_scc1 L_q\nL_adone:")
    if stamps:
        i8 = 72 + 2 * used.index(8); i7 = 72 + 2 * used.index(7)
        a(f"s_waitcnt lgkmcnt(0)\ns_add_u32 s10, s38, {STAMP_OFF}\ns_addc_u32 s11, s39, 0\ns_mul_i32 s12, s2, {NST*8}\ns_lshl_b32 s13, s3, 3\ns_add_u32 s12, s12, s13\nv_mov_b32 v1, s12\ns_mov_b64 exec, 1")
        a(f"v_mov_b32 v2, s{i8}\nv_mov_b32 v3, s{i8+1}\nglobal_store_dwordx2 v1, v[2:3], s[10:11] offset:{8*28}\ns_nop 1")
        a(f"v_mov_b32 v2, s{i7}\nv_mov_b32 v3, s{i7+1}\nglobal_store_dwordx2 v1, v[2:3], s[10:11] offset:{8*36}\ns_nop 1")
        a("s_cmp_lg_u32 s3, 0\ns_cbranch_scc1 L_exit")
        flush_stamps()
    a("s_endpgm")
    a("L_ojob:\ns_cmp_eq_u32 s3, 7\ns_cbranch_scc1 L_q")
    lds_wait(F_A, 8, sleep=1)
    a("s_branch L_ojob2")
    if not o["nopoll"]:
        a("L_stretry:")
        poll(STL, [49, 51, 53, 55])
        a("s_branch L_stok")

    a.c("======== helper wave: layernorm, hand-off gathers, final reduction")
    a("L_helper:\ns_setprio 3")
    srd(52, 16, 3584)
    a(f"""
    s_getreg_b32 s65, hwreg(HW_REG_XCC_ID, 0, 4)
    s_cmp_eq_u32 s60, {T_P}
    s_cbranch_scc0 L_noln
    v_mul_u32_u24 v9, 896, v5
    v_lshl_add_u32 v9, v6, 3, v9
    """)
    XR = 16; U = 32
    for u in range(7):
        a(f"buffer_load_dwordx2 {vr(XR+2*u,2)}, v9, s[52:55], 0 offen offset:{u*128}")
    a(f"""
    v_mul_u32_u24 v9, {XNS}, v5
    v_lshl_add_u32 v9, v6, 3, v9
    v_add_u32 v9, {L_XN}, v9
    s_waitcnt vmcnt(0)
    """)
    for u in range(14):
        a(f"v_lshlrev_b32 v{U+2*u}, 16, v{XR+u}\nv_and_b32 v{U+2*u+1}, 0xffff0000, v{XR+u}")
    a(f"v_pk_add_f32 v[60:61], v[{U}:{U+1}], v[{U+2}:{U+3}]")
    for u in range(2, 14):
        a(f"v_pk_add_f32 v[60:61], v[60:61], v[{U+2*u}:{U+2*u+1}]")
    a("v_add_f32 v60, v60, v61")
    red("v_add_f32", [60], ROR(8, 4, 2, 1))
    a(f"v_mul_f32 v60, {f2u(1/448)}, v60\nv_mov_b32 v61, v60")
    for u in range(14):
        a(f"v_pk_add_f32 v[64:65], v[{U+2*u}:{U+2*u+1}], v[60:61] neg_lo:[0,1] neg_hi:[0,1]")
        a("v_pk_mul_f32 v[62:63], v[64:65], v[64:65]" if u == 0 else "v_pk_fma_f32 v[62:63], v[64:65], v[64:65], v[62:63]")
    a("v_add_f32 v62, v62, v63")
    red("v_add_f32", [62], ROR(8, 4, 2, 1))
    a(f"v_mul_f32 v62, {f2u(1/448)}, v62")
    round_bf16(62, 62)
    a(f"v_add_f32 v62, {f2u(1e-5)}, v62")
    round_bf16(62, 62)
    a("v_sqrt_f32 v62, v62")
    round_bf16(62, 62)
    a("v_rcp_f32 v62, v62")
    round_bf16(60, 60)
    a("v_mov_b32 v61, v60\nv_mov_b32 v63, v62")
    for u in range(14):
        a(f"v_pk_add_f32 v[64:65], v[{U+2*u}:{U+2*u+1}], v[60:61] neg_lo:[0,1] neg_hi:[0,1]")
        a(f"v_cvt_pk_bf16_f32 v64, v64, v65\nv_and_b32 v65, 0xffff0000, v64\nv_lshlrev_b32 v64, 16, v64")
        a(f"v_pk_mul_f32 v[64:65], v[64:65], v[62:63]\nv_cvt_pk_bf16_f32 v{XR+u}, v64, v65")
    for u in range(7):
        a(f"ds_write_b64 v9, {vr(XR+2*u,2)} offset:{u*128}")
    a("s_waitcnt lgkmcnt(0)")
    sig_set(F_XN, 1)
    a("L_noln:")
    stamp(16)
    get_tag()
    a(f"""
    s_lshl_b32 s58, s40, 7
    s_add_u32 s58, s58, {XB}
    v_lshlrev_b32 v10, 3, v0
    s_cmp_eq_u32 s60, {T_WO}
    s_cbranch_scc0 L_noxb
    v_mov_b32 v16, s65
    v_mov_b32 v17, s{S_TAG}
    s_lshl_b32 s45, s43, 3
    v_mov_b32 v18, s45
    s_mov_b64 exec, 1
    buffer_store_dwordx2 v[16:17], v18, s[48:51], s58 offen sc1
    s_mov_b64 exec, -1
    L_noxb:
    s_sub_u32 s59, s2, 128
    s_and_b32 s45, s59, 3
    s_lshr_b32 s46, s59, 2
    s_mul_i32 s47, s45, 28
    s_add_u32 s47, s47, s46
    s_lshl_b32 s66, s47, 12
    s_mul_i32 s45, s45, 896
    s_lshr_b32 s47, s46, 2
    s_lshl_b32 s47, s47, 7
    s_add_u32 s45, s45, s47
    s_and_b32 s46, s46, 3
    s_lshl_b32 s46, s46, 3
    s_add_u32 s63, s45, s46
    v_and_b32 v12, 1, v5
    v_lshlrev_b32 v12, 6, v12
    v_lshrrev_b32 v13, 1, v5
    v_lshl_add_u32 v12, v13, 5, v12
    v_lshl_add_u32 v12, v8, 1, v12
    s_mul_i32 s45, s42, {RB_B}
    s_lshl_b32 s46, s40, 11
    s_add_u32 s45, s45, s46
    s_add_u32 s45, s45, {RBUF}
    v_lshlrev_b32 v9, 4, v0
    v_add_u32 v11, {L_QL}, v10
    s_add_u32 s46, s64, {o['qat']}
    s_cmp_eq_u32 s64, 0
    s_cselect_b32 s46, {o['qat0']}, s46
    """)
    lds_wait(F_PROG, "s46", sleep=2)
    stamp(22)
    QL = ["s_mov_b64 exec, 0xff", "buffer_load_dwordx2 v[24:25], v10, s[48:51], s58 offen sc1", "s_mov_b64 exec, -1",
          "buffer_load_dwordx4 v[16:19], v9, s[48:51], s45 offen sc1",
          "buffer_load_dwordx4 v[20:23], v9, s[48:51], s45 offen offset:1024 sc1"]
    a(f"s_cmp_eq_u32 s60, {T_DN}\ns_cbranch_scc0 L_nodn")
    a(f"""
    v_mul_u32_u24 v14, {RB_B}, v5
    v_lshl_add_u32 v14, v6, 4, v14
    s_lshl_b32 s46, s61, 8
    s_add_u32 s46, s46, {RBUF+64*256}
    s_add_u32 s47, s46, {28*256}
    v_mul_u32_u24 v15, {ALS}, v5
    v_lshrrev_b32 v30, 3, v6
    v_lshl_add_u32 v15, v30, 6, v15
    v_lshl_add_u32 v15, v8, 4, v15
    v_bfe_u32 v30, v6, 2, 1
    v_lshl_add_u32 v15, v30, 3, v15
    v_add_u32 v15, {L_AL}, v15
    """)
    poll(QL + ["buffer_load_dwordx4 v[32:35], v14, s[48:51], s46 offen sc1",
          "buffer_load_dwordx4 v[36:39], v14, s[48:51], s47 offen sc1"], [17, 19, 21, 23, 33, 35, 37, 39], sleep=o["rsleep"])
    for i, (gq, uq) in enumerate(((32, 36), (34, 38))):
        a(f"""
        v_lshlrev_b32 v40, 16, v{gq}
        v_and_b32 v41, 0xffff0000, v{gq}
        v_lshlrev_b32 v42, 16, v{uq}
        v_and_b32 v43, 0xffff0000, v{uq}
        v_max_f32 v40, 0, v40
        v_max_f32 v41, 0, v41
        v_mul_f32 v40, v40, v42
        v_mul_f32 v41, v41, v43
        v_cvt_pk_bf16_f32 v{28+i}, v40, v41
        """)
    a("ds_write_b64 v15, v[28:29]\ns_waitcnt lgkmcnt(0)")
    sig_set(F_A, 8)
    a("s_branch L_gotq\nL_nodn:")
    poll(QL, [17, 19, 21, 23], sleep=o["rsleep"])
    a("L_gotq:")
    a(f"""
    ds_write2_b32 v11, v16, v18 offset0:0 offset1:1
    ds_write2_b32 v11, v20, v22 offset0:{QLS//4} offset1:{QLS//4+1}
    v_cmp_eq_u32 vcc, s{S_TAG}, v25
    v_cmp_eq_u32 s[10:11], s65, v24
    s_and_b32 s10, s10, vcc_lo
    s_and_b32 s10, s10, 0xff
    s_cmp_eq_u32 s10, 0xff
    s_cselect_b32 s10, {o['fast']}, 0
    """)
    sig_set(F_FAST, "s10")
    a("s_waitcnt lgkmcnt(0)")
    sig_set(F_Q, 1)
    stamp(17)
    stamp(18)
    a(f"""
    s_cmp_lt_u32 s59, 112
    s_cbranch_scc0 L_hdone
    buffer_load_ushort v13, v12, s[52:55], s63 offen
    s_add_u32 s46, s66, {YBUF}
    s_add_u32 s45, s66, {FBUF}
    s_mov_b32 s4, 0x0c0c0400
    s_mov_b32 s5, 0x0c040100
    s_mov_b32 s6, 0x04020100
    s_and_b32 s7, s{S_TAG}, 0xff
    v_mov_b32 v20, s7
    s_bfe_u32 s7, s{S_TAG}, 0x80008
    v_mov_b32 v21, s7
    s_bfe_u32 s7, s{S_TAG}, 0x80010
    v_mov_b32 v22, s7
    s_lshr_b32 s7, s{S_TAG}, 24
    v_mov_b32 v23, s7
    s_add_u32 s47, s64, {o['yat']}
    """)
    srd(52, 34, 3584)
    lds_wait(F_PROG, "s47", sleep=2)
    poll(["buffer_load_dwordx4 v[16:19], v9, s[48:51], s46 offen sc1", "s_mov_b32 exec_hi, 0xffff",
          "buffer_load_dwordx4 v[20:23], v9, s[48:51], s46 offen offset:1024 sc1", "s_mov_b32 exec_hi, -1"], [40, 41], sleep=4,
         pre=e4_tags([16, 20], 40))
    for k in range(4): a(f"v_add_f32 v{16+k}, v{16+k}, v{20+k}")
    red4(16)
    round_bf16(16, 16)
    a(f"v_mul_f32 v20, {f2u(-LOG2E)}, v16\nv_exp_f32 v20, v20\nv_add_f32 v20, 1.0, v20\nv_rcp_f32 v20, v20\nv_mul_f32 v16, v16, v20")
    round_bf16(16, 16)
    a("v_lshlrev_b32 v13, 16, v13")
    stamp(19)
    stamp(23)
    poll([f"buffer_load_dwordx4 {vr(24+4*t,4)}, v9, s[48:51], s45 offen offset:{t*1024} sc1" for t in range(4)],
         [40, 41, 42, 43], pre=e4_tags([24, 28, 32, 36], 40))
    stamp(20)
    for k in range(4): a(f"v_add_f32 v{24+k}, v{24+k}, v{28+k}\nv_add_f32 v{32+k}, v{32+k}, v{36+k}")
    for k in range(4): a(f"v_add_f32 v{24+k}, v{24+k}, v{32+k}")
    red4(24)
    round_bf16(24, 24)
    a("v_mul_f32 v24, v24, v16")
    round_bf16(24, 24)
    a(f"""
    v_add_f32 v24, v24, v13
    v_cvt_pk_bf16_f32 v24, v24, v24
    s_mov_b32 exec_lo, 0x000f000f
    s_mov_b32 exec_hi, 0x000f000f
    buffer_store_short v24, v12, s[52:55], s63 offen {'sc1' if o['outsc1'] else ''}
    s_cmp_lg_u32 s59, 0
    s_cbranch_scc1 L_hdone
    s_mov_b64 exec, 1
    v_mov_b32 v2, s{S_TAG}
    v_mov_b32 v3, 0
    buffer_store_dword v2, v3, s[48:51], 0 offen offset:{EPOCH}
    L_hdone:
    """)
    stamp(21)
    flush_stamps()
    a("L_exit:\ns_endpgm\nL_codeend:")
    body = hazard.fix(a.text())
    return kernel_file([(NAME + "_kernel", body, 136, 100, 136)], [(NAME + "_kernel", 256, 640, LDS_BYTES)])

if __name__ == "__main__":
    out = sys.argv[1]
    kw = {}
    for x in sys.argv[2:]:
        k, v = x.split("=")
        kw[k] = (v.replace("def", "").replace("+", " ") if k.startswith("pol") else int(v))
    open(out, "w").write(gen(**kw))
```

```python
import sys, struct
sys.path.insert(0, "tools")
from asmlib import *
import hazard

EPOCH = 0
RBUF = 0x1000; RB_B = 120 * 256
RNEAR = 0x40000
STB = 0x20000
TB = 0x26000
AG = 0x27000
HC = 0x28000
XB = 0x24000
OBUF = 0x100000
FBUF = 0x200000
YBUF = 0x280000
WS_REC = 0x400000
STAMP_OFF = 128 << 20
L_A = 0; L_B = 65536; OS = 928
L_XN = 131072; XNS = 912
L_QL = L_XN + 4 * XNS; QLS = 544
L_SL = L_QL + 2 * QLS
L_PL = L_SL + 512; PLS = 288
L_AL = L_PL + 2 * PLS; ALS = 144
L_FLAG = L_AL + 4 * ALS
LDS_BYTES = L_FLAG + 256
F_XN, F_Q, F_PROG, F_KC, F_TC, F_S, F_A, F_FAST, F_T0 = 0, 4, 8, 12, 16, 20, 24, 28, 32
LOG2E = 1.4426950408889634
def f2u(x): return "0x%08x" % struct.unpack("<I", struct.pack("<f", x))[0]
T_NONE, T_P, T_WO, T_DN = 0, 1, 2, 3
DEF = dict(lagQ=28, lagT=16, lagTw=16, lagKb=20, lagKw=20, lagKs=12, lagVb=28, lagVw=28, lagVs=12, lagL=40, pol_kv="nt", pol_w="nt", stamps=0, prefetch=1,
           nopoll=0, fast=1, q_wq=24, q_gu=20, q_dn=22, q_wo=19, q_no=18, outsc1=0, rsleep=16, late=0, pipeb=0, rot=4, sched=1, D=780, t1=150, tq=210, lagLo=12, lagHi=32, qa=6, qrounds=6, h_at=27, hint=1, lead=-1, aggat=26, hdelay=0)

def gen(**kw):
    o = dict(DEF); o.update(kw)
    stamps = o["stamps"]; NST = 44; pol_kv = o["pol_kv"]; pol_w = o["pol_w"]; late = o["late"]
    assert pol_kv == pol_w
    a = Asm()
    S_TAG = 15
    used = []
    def stamp(k):
        if stamps:
            a(f"s_memrealtime s[{72+2*len(used)}:{73+2*len(used)}]"); used.append(k)
    def zero_stamps():
        if stamps:
            for i in range(13): a(f"s_mov_b64 s[{72+2*i}:{73+2*i}], 0")
    def flush_stamps():
        if stamps and used:
            a(f"s_waitcnt lgkmcnt(0)\ns_add_u32 s10, s38, {STAMP_OFF}\ns_addc_u32 s11, s39, 0\ns_mul_i32 s12, s2, {NST*8}\nv_mov_b32 v1, s12\ns_mov_b64 exec, 1")
            for i, k in enumerate(used):
                a(f"v_mov_b32 v2, s{72+2*i}\nv_mov_b32 v3, s{73+2*i}\nglobal_store_dwordx2 v1, v[2:3], s[10:11] offset:{8*k}\ns_nop 1")
        used.clear()
    def srd(reg, ptr, size):
        a(f"s_mov_b32 s{reg}, s{ptr}\ns_mov_b32 s{reg+1}, s{ptr+1}\ns_mov_b32 s{reg+2}, {size}\ns_mov_b32 s{reg+3}, 0x20000")
    def lds_wait(off, need, sleep=0):
        l = a.label("lw"); d = a.label("lwd")
        a(f"s_mov_b32 s12, 0x20000\n{l}:\nds_read_b32 v2, v1 offset:{off}\ns_waitcnt lgkmcnt(0)\nv_cmp_le_i32 vcc, {need}, v2\ns_cbranch_vccnz {d}")
        if sleep: a(f"s_sleep {sleep}")
        a(f"s_sub_u32 s12, s12, 1\ns_cbranch_scc0 {l}\n{d}:")
    def sig_set(off, val):
        a(f"v_mov_b32 v2, {val}\nds_write_b32 v1, v2 offset:{off}")
    def sig_add(off):
        a(f"s_mov_b64 exec, 1\nv_mov_b32 v2, 1\nds_add_u32 v1, v2 offset:{off}\ns_mov_b64 exec, -1")
    def get_tag():
        a(f"s_waitcnt lgkmcnt(0)\ns_mul_i32 s{S_TAG}, s14, 0x9E3779B1\ns_add_u32 s{S_TAG}, s{S_TAG}, 0x632BE5AB")
    def chk(regs):
        a(f"v_cmp_ne_u32 vcc, s{S_TAG}, v{regs[0]}")
        for t in regs[1:]: a(f"v_cmp_ne_u32 s[10:11], s{S_TAG}, v{t}\ns_or_b64 vcc, vcc, s[10:11]")
    def poll(loads, tagregs, sleep=0, pre=None):
        if o["nopoll"]: return
        l = a.label("pl"); d = a.label("pld")
        a(f"s_mov_b32 s12, 0x2000\n{l}:")
        for x in loads: a(x)
        a("s_waitcnt vmcnt(0)")
        if pre: a(pre)
        chk(tagregs)
        a(f"s_cbranch_scc0 {d}")
        if sleep: a(f"s_sleep {sleep}")
        a(f"s_sub_u32 s12, s12, 1\ns_cbranch_scc0 {l}\n{d}:")
    DPP = "row_mask:0xf bank_mask:0xf"
    def red(op, vs, steps, tmps=None):
        for st in steps:
            if st in ("x16", "x32"):
                sw = "v_permlane16_swap_b32" if st == "x16" else "v_permlane32_swap_b32"
                for v, t in zip(vs, tmps): a(f"v_mov_b32 v{t}, v{v}")
                for v, t in zip(vs, tmps): a(f"{sw} v{v}, v{t}")
                for v, t in zip(vs, tmps): a(f"{op} v{v}, v{v}, v{t}")
            else:
                for v in vs: a(f"{op}_dpp v{v}, v{v}, v{v} {st} {DPP}")
    ROR = lambda *k: ["row_ror:%d" % i for i in k]
    def round_bf16(dst, src):
        a(f"v_cvt_pk_bf16_f32 v{dst}, v{src}, v{src}\nv_and_b32 v{dst}, 0xffff0000, v{dst}")
    def e4_tags(bases, dst):
        s = ""
        for i, b in enumerate(bases): s += f"v_perm_b32 v{dst+i}, v{b+1}, v{b}, s4\n"
        for i, b in enumerate(bases): s += f"v_perm_b32 v{dst+i}, v{b+2}, v{dst+i}, s5\n"
        for i, b in enumerate(bases): s += f"v_perm_b32 v{dst+i}, v{b+3}, v{dst+i}, s6\n"
        return s
    def red4(b):
        a(f"""
        v_permlane32_swap_b32 v{b}, v{b+1}
        v_permlane32_swap_b32 v{b+2}, v{b+3}
        v_add_f32 v{b}, v{b}, v{b+1}
        v_add_f32 v{b+2}, v{b+2}, v{b+3}
        v_permlane16_swap_b32 v{b}, v{b+2}
        v_add_f32 v{b}, v{b}, v{b+2}
        v_add_f32_dpp v{b}, v{b}, v{b} row_ror:4 {DPP}
        v_add_f32_dpp v{b}, v{b}, v{b} row_ror:8 {DPP}
        """)
    def store_near(instr):
        l = a.label("far"); d = a.label("st")
        a(f"s_cmp_eq_u32 s65, 0\ns_cbranch_scc1 {l}\n{instr}\ns_branch {d}\n{l}:\n{instr} sc1\n{d}:")
    KB_WO = 8 if late else 16

    a("s_cmp_ge_u32 s2, 256\ns_cbranch_scc1 L_exit")
    a("s_load_dwordx16 s[16:31], s[0:1], 0\ns_load_dwordx8 s[32:39], s[0:1], 64")
    if stamps or o["sched"]: a("s_memrealtime s[70:71]")
    if o["prefetch"]:
        a.c("pull this kernel's code into L2 as data (a quarter per workgroup, one 128-B line per lane)")
        a(f"""
        s_getpc_b64 s[4:5]
        L_pc:
        s_bfe_u32 s6, s2, 0x20003
        s_lshl_b32 s6, s6, 12
        v_lshl_add_u32 v1, v0, 7, s6
        v_min_u32 v1, L_codeend-L_pc-4, v1
        v_cmp_gt_u32 vcc, 32, v0
        s_and_saveexec_b64 s[8:9], vcc
        s_cbranch_execz L_nopf
        global_load_dword v3, v1, s[4:5]
        L_nopf:
        s_mov_b64 exec, s[8:9]
        """)
    a(f"""
    v_lshrrev_b32 v4, 6, v0
    v_and_b32 v0, 63, v0
    s_and_b32 s40, s2, 7          ; hkv
    v_readfirstlane_b32 s3, v4
    s_lshr_b32 s41, s2, 3         ; j = 8*b + c
    s_lshr_b32 s42, s2, 6         ; b
    s_and_b32 s43, s41, 7         ; c
    s_lshl_b32 s61, s40, 3
    s_add_u32 s61, s61, s43
    s_add_u32 s60, s42, 1
    s_cmp_eq_u32 s42, 0
    s_cselect_b32 s64, 14, {KB_WO}
    s_cmp_lt_u32 s42, 2
    s_cbranch_scc1 L_typed
    s_sub_u32 s61, s2, 64
    s_mov_b32 s60, {T_P}
    s_mov_b32 s64, 14
    s_cmp_lt_u32 s61, 120
    s_cbranch_scc1 L_typed
    s_sub_u32 s61, s61, 120
    s_cmp_lt_u32 s61, 28
    s_cselect_b32 s60, {T_DN}, {T_NONE}
    s_cselect_b32 s64, 16, 0
    L_typed:
    v_mov_b32 v1, {L_FLAG}
    v_lshrrev_b32 v5, 4, v0       ; g
    s_cmp_eq_u32 s3, 0
    s_cbranch_scc1 L_loader
    s_barrier
    s_branch L_notloader
    L_loader:
    """)
    a.c("======== loader wave (wave 0): units of 4 LDS-DMA loads, s8 = units kept in flight, F_PROG = units landed")
    sched = o["sched"]
    tauq = int(round((o["D"] - o["tq"]) * 16 / 32))
    tau = lambda U: int(round((o["D"] - o["t1"]) * 16 / U))
    lags = [o["lagHi"], o["lagLo"]] if sched else sorted({o[k] for k in ("lagQ", "lagT", "lagTw", "lagKb", "lagKw", "lagKs", "lagVb", "lagVw", "lagVs", "lagL")}, reverse=True)
    T0INIT = f"v_mov_b32 v2, s70\nds_write_b32 v1, v2 offset:{F_T0}\ns_waitcnt lgkmcnt(0)" if sched else ""
    LOOPTOP = f"s_memrealtime s[10:11]\nds_read_b32 v3, v1 offset:{F_T0}" if sched else ""
    a(f"""
    s_setprio 2
    s_mov_b32 s7, 0
    s_mov_b32 s57, {o['t1']*16}
    s_mov_b32 s59, s57
    s_mov_b32 s56, {tau(46)}
    s_cmp_eq_u32 s64, 16
    s_cselect_b32 s56, {tau(48)}, s56
    s_cmp_eq_u32 s64, 8
    s_cselect_b32 s56, {tau(40)}, s56
    s_cmp_eq_u32 s64, 0
    s_cselect_b32 s56, {tau(32)}, s56
    v_lshl_add_u32 v4, v0, 2, v1
    v_mov_b32 v2, 0
    ds_write_b32 v4, v2
    v_lshlrev_b32 v9, 1, v5
    v_xor_b32 v9, v9, v0
    v_and_b32 v9, 7, v9
    v_lshlrev_b32 v9, 4, v9
    v_lshrrev_b32 v11, 3, v0
    s_mov_b32 s4, 0
    s_mov_b32 s5, 0                       ; phase
    s_mov_b32 s47, s64
    s_mov_b32 s63, 0
    s_mov_b32 s44, -1
    s_mov_b32 s55, 0x20000
    s_mov_b32 m0, {L_B}
    s_cmp_eq_u32 s60, {T_P}
    s_cbranch_scc0 L_ld_notp
    s_cmp_lt_u32 s61, 64
    s_cselect_b32 s8, {o['lagQ']//4}, {o['lagT']//4}
    s_movk_i32 s45, 3584
    s_cselect_b32 s45, 8192, s45
    s_cselect_b32 s46, 0, 64
    s_mul_i32 s54, s45, 448
    v_mad_u32_u24 v12, s45, v11, v9
    s_lshl_b32 s6, s45, 3
    s_lshl_b32 s45, s45, 5
    s_movk_i32 s9, 1024
    s_waitcnt lgkmcnt(0)
    {T0INIT}
    s_barrier
    s_cmp_lt_u32 s61, 64
    s_cselect_b32 s57, -30000, s57
    s_cselect_b32 s59, {o['tq']*16-14*tauq}, s59
    s_cselect_b32 s56, {tauq}, s56
    s_cselect_b32 s52, s22, s28
    s_cselect_b32 s53, s23, s29
    s_cmp_lt_u32 s61, 92
    s_cselect_b32 s52, s52, s30
    s_cselect_b32 s53, s53, s31
    s_cselect_b32 s46, s46, 92
    s_sub_u32 s46, s61, s46
    s_lshl_b32 s46, s46, 7
    s_branch L_ld_go
    L_ld_notp:
    s_waitcnt lgkmcnt(0)
    {T0INIT}
    s_barrier
    s_cmp_eq_u32 s60, {T_NONE}
    s_cbranch_scc1 L_ld_k
    s_mul_i32 s46, s61, {64*896}
    s_cmp_eq_u32 s60, {T_WO}
    s_cselect_b32 s8, {o['lagTw']//4}, {o['lagT']//4}
    L_ld_o:
    v_lshlrev_b32 v12, 4, v0
    s_mov_b32 s54, {4096*896}
    s_cmp_eq_u32 s60, {T_DN}
    s_cselect_b32 s52, s32, s24
    s_cselect_b32 s53, s33, s25
    s_cselect_b32 s54, {1792*896}, s54
    s_movk_i32 s6, 896
    s_movk_i32 s45, 3584
    s_movk_i32 s9, {OS}
    s_mov_b32 exec_hi, 0x00ffffff
    L_ld_go:
    v_add_u32 v13, s6, v12
    v_add_u32 v14, s6, v13
    v_add_u32 v15, s6, v14
    L_ld_loop:
    {LOOPTOP}
    s_add_u32 s62, s46, s63
    buffer_load_dwordx4 v12, s[52:55], s62 offen {pol_kv} lds
    s_add_u32 m0, m0, s9
    s_add_u32 s4, s4, 1
    buffer_load_dwordx4 v13, s[52:55], s62 offen {pol_kv} lds
    s_add_u32 m0, m0, s9
    s_mul_i32 s58, s7, s56
    buffer_load_dwordx4 v14, s[52:55], s62 offen {pol_kv} lds
    s_add_u32 m0, m0, s9
    s_add_u32 s58, s58, s57               ; time (x16) by which the landed units were due
    buffer_load_dwordx4 v15, s[52:55], s62 offen {pol_kv} lds
    s_add_u32 m0, m0, s9
    s_add_u32 s46, s46, s45
    s_and_b32 s46, s46, s44
    """)
    if sched:
        a.c("behind the common schedule (a late XCD, a long job): keep more loads in flight, else fewer")
        a(f"""
        s_waitcnt lgkmcnt(0)
        v_readfirstlane_b32 s11, v3
        s_sub_u32 s10, s10, s11
        s_lshl_b32 s10, s10, 4
        s_cmp_gt_i32 s10, s58
        s_cselect_b32 s8, {o['lagHi']//4}, {o['lagLo']//4}
        """)
    a("s_sub_u32 s10, s4, s8\ns_max_i32 s7, s7, s10\nv_mov_b32 v2, s7")
    for i, lg in enumerate(lags):
        a(f"s_waitcnt vmcnt({lg})")
        if i + 1 < len(lags): a(f"s_cmp_ge_u32 s8, {lg//4}\ns_cbranch_scc1 L_ld_paced")
    a(f"""
    L_ld_paced:
    ds_write_b32 v1, v2 offset:{F_PROG}
    s_cmp_lt_u32 s4, s47
    s_cbranch_scc1 L_ld_loop
    s_mov_b64 exec, -1
    s_cmp_eq_u32 s5, 1
    s_cbranch_scc1 L_ld_v
    s_cmp_gt_u32 s5, 1
    s_cbranch_scc1 L_ld_last
    L_ld_k:
    """)
    zero_stamps(); stamp(11)
    ROT = {0: "s_mov_b32 s13, 0",
           1: "s_lshl_b32 s13, s43, 13",
           2: "s_and_b32 s13, s41, 15\ns_lshl_b32 s13, s13, 12",
           3: "s_mul_i32 s13, s2, 5\ns_and_b32 s13, s13, 15\ns_lshl_b32 s13, s13, 12",
           4: "s_lshl_b32 s13, s43, 1\ns_add_u32 s13, s13, s40\ns_and_b32 s13, s13, 15\ns_lshl_b32 s13, s13, 12",
           5: "s_add_u32 s13, s41, s40\ns_and_b32 s13, s13, 15\ns_lshl_b32 s13, s13, 12",
           6: "s_lshl_b32 s13, s40, 13",
           7: "s_lshl_b32 s13, s43, 1\ns_lshr_b32 s6, s42, 1\ns_add_u32 s13, s13, s6\ns_lshl_b32 s13, s13, 12"}[o["rot"]]
    a(f"""
    s_mov_b32 s5, 1
    s_mov_b32 s57, s59
    s_mov_b32 s52, s18
    s_mov_b32 s53, s19
    s_mov_b32 s54, 0x4000000
    v_lshl_add_u32 v12, v11, 9, v9
    s_lshl_b32 s63, s42, 3
    s_add_u32 s63, s63, s40
    s_lshl_b32 s63, s63, 21
    s_lshl_b32 s46, s43, 16
    s_add_u32 s63, s63, s46
    s_add_u32 s63, s63, {3072*512}
    {ROT}
    s_mov_b32 s46, s13
    s_mov_b32 s44, 0xffff
    s_movk_i32 s6, 128
    s_movk_i32 s45, 4096
    s_movk_i32 s9, 1024
    s_add_u32 s47, s64, 16
    s_cmp_lg_u32 s64, 0
    s_cselect_b32 s8, {o['lagKb']//4}, {o['lagKs']//4}
    s_cmp_eq_u32 s60, {T_WO}
    s_cselect_b32 s8, {o['lagKw']//4}, s8
    s_mov_b32 m0, {L_A}
    s_branch L_ld_go
    L_ld_v:
    """)
    stamp(12)
    a(f"""
    s_mov_b32 s5, 2
    s_mov_b32 s52, s20
    s_mov_b32 s53, s21
    s_mov_b32 s46, s13
    s_add_u32 s47, s64, 32
    s_cmp_lg_u32 s64, 0
    s_cselect_b32 s8, {o['lagVb']//4}, {o['lagVs']//4}
    s_cselect_b32 s6, 7, 0
    s_cmp_eq_u32 s60, {T_P}
    s_cselect_b32 s6, 4, s6
    s_cmp_eq_u32 s60, {T_WO}
    s_cselect_b32 s8, {o['lagVw']//4}, s8
    """)
    lds_wait(F_TC, "s6")
    a(f"s_mov_b32 m0, {L_B}\ns_branch L_ld_loop\nL_ld_last:")
    if late:
        a(f"""
        s_cmp_eq_u32 s5, 2
        s_cselect_b32 s6, {T_WO}, -1
        s_cmp_eq_u32 s60, s6
        s_cbranch_scc0 L_drain
        s_mov_b32 s5, 3
        s_mov_b32 s57, -30000
        s_mov_b32 s63, 0
        s_mov_b32 s44, -1
        s_mul_i32 s46, s61, {64*896}
        s_add_u32 s46, s46, {32*896}
        s_mov_b32 s8, {o['lagL']//4}
        s_add_u32 s47, s4, 8
        """)
        lds_wait(F_KC, 8)
        a(f"s_mov_b32 m0, {L_A}\ns_branch L_ld_o\nL_drain:")
    stamp(14)
    for k in range(lags[0] // 4 - 1, -1, -1):
        a(f"s_sub_u32 s6, s4, {k}\ns_max_i32 s6, s6, s7\nv_mov_b32 v2, s6\ns_waitcnt vmcnt({4*k})\nds_write_b32 v1, v2 offset:{F_PROG}")
    stamp(15)
    if stamps: a(f"s_cmp_eq_u32 s60, {T_WO}\ns_cbranch_scc1 L_exit")
    flush_stamps()
    a("s_endpgm")
    a(f"""
    L_notloader:
    v_and_b32 v6, 15, v0          ; n
    v_bfe_u32 v7, v0, 2, 2        ; r
    v_and_b32 v8, 3, v0           ; cc
    s_sub_u32 s3, s3, 2
    s_waitcnt lgkmcnt(0)
    s_load_dword s14, s[38:39], {EPOCH}
    """)
    zero_stamps()
    srd(48, 38, WS_REC)
    a("s_cmp_eq_u32 s3, -1\ns_cbranch_scc1 L_helper")

    a.c("======== attention waves 0..7")
    if stamps:
        a("s_mov_b64 s[72:73], s[70:71]"); used.append(0)
    KR = 16; QR = 48; WB = 104
    get_tag()
    a(f"""
    v_lshl_add_u32 v9, v5, 2, v7
    v_bfe_u32 v10, v9, 1, 2               ; f = (row>>1)&3
    v_mov_b32 v102, 0
    s_cmp_eq_u32 s60, {T_P}
    s_cbranch_scc1 L_pjob
    s_cmp_eq_u32 s60, {T_NONE}
    s_cbranch_scc1 L_k
    v_mul_u32_u24 v100, {OS}, v9
    v_lshl_add_u32 v100, v8, 3, v100
    s_lshl_b32 s46, s3, 7
    v_add_u32 v100, s46, v100
    v_add_u32 v11, {L_B}, v100
    v_mul_u32_u24 v101, {ALS}, v7
    v_lshl_add_u32 v101, v5, 4, v101
    v_add_u32 v101, {L_AL}, v101
    v_mul_u32_u24 v102, 28, v5
    v_add_u32 v102, v102, v7
    v_lshlrev_b32 v102, 12, v102
    v_lshl_add_u32 v102, v8, 4, v102
    v_mov_b32 v103, s{S_TAG}
    s_lshl_b32 s46, s3, 14
    s_lshl_b32 s47, s61, 6
    s_add_u32 s59, s46, s47
    s_cmp_eq_u32 s60, {T_DN}
    s_cselect_b32 s46, {YBUF-FBUF}, 0
    s_add_u32 s59, s59, s46
    s_add_u32 s59, s59, {FBUF}
    s_mov_b32 s4, 0x07060500
    s_mov_b32 s5, 0x07060501
    s_mov_b32 s6, 0x07060502
    s_mov_b32 s7, 0x07060503
    s_cmp_eq_u32 s3, 7
    s_cbranch_scc1 L_k
    """)
    def wread(vaddr, ks, base):
        for jt in range(4):
            for half in range(2):
                a(f"ds_read_b64_tr_b16 {vr(WB+16*ks+4*jt+2*half,2)}, v{vaddr} offset:{base+half*16*OS+jt*32}")
    a.c("---- early part of the out tile: operands to registers")
    lds_wait(F_PROG, 8, sleep=1)
    wread(11, 0, 0)
    if late: a(f"s_cmp_eq_u32 s60, {T_WO}\ns_cbranch_scc1 L_tc")
    lds_wait(F_PROG, 16, sleep=1)
    wread(11, 1, 32 * OS)
    a("L_tc:\ns_waitcnt lgkmcnt(0)")
    sig_add(F_TC)
    a("s_branch L_k\nL_pjob:\ns_cmp_lt_u32 s3, 4\ns_cbranch_scc0 L_k")
    a.c("---- projection job: xn[4x448] x W[448x16] per wave")
    AR = 48; BR = 104
    a(f"""
    v_mul_u32_u24 v11, {XNS}, v7
    v_lshl_add_u32 v11, v5, 4, v11
    v_add_u32 v11, {L_XN}, v11
    v_lshlrev_b32 v12, 7, v9
    v_xor_b32 v13, s3, v10
    v_lshl_add_u32 v12, v13, 5, v12
    v_lshl_add_u32 v12, v8, 3, v12
    v_add_u32 v12, {L_B}, v12
    v_mul_u32_u24 v13, {RB_B}, v5
    v_lshrrev_b32 v14, 1, v6
    v_lshl_add_u32 v13, v14, 3, v13
    s_lshl_b32 s45, s61, 8
    s_lshl_b32 s46, s3, 6
    s_add_u32 s45, s45, s46
    s_add_u32 s46, s45, {RNEAR}
    s_add_u32 s45, s45, {RBUF}
    v_mov_b32 v15, s{S_TAG}
    """)
    lds_wait(F_XN, 1, sleep=1)
    for t in range(14):
        a(f"ds_read_b128 {vr(AR+4*t,4)}, v11 offset:{t*64}")
    for t0 in (0, 7):
        lds_wait(F_PROG, 7 if t0 == 0 else 14)
        if t0: stamp(2)
        for t in range(7):
            a(f"ds_read_b64_tr_b16 {vr(BR+4*t,2)}, v12 offset:{(t0+t)*4096}")
            a(f"ds_read_b64_tr_b16 {vr(BR+4*t+2,2)}, v12 offset:{(t0+t)*4096+2048}")
        for t in range(7):
            a(f"s_waitcnt lgkmcnt({2*(6-t)})")
            a(f"v_mfma_f32_16x16x32_bf16 v[132:135], {vr(AR+4*(t0+t),4)}, {vr(BR+4*t,4)}, {'0' if t0+t==0 else 'v[132:135]'}")
    a(f"""
    v_mov_b32_dpp v14, v132 quad_perm:[1,0,3,2] {DPP}
    v_cvt_pk_bf16_f32 v14, v132, v14
    s_mov_b32 exec_lo, 0x55555555
    s_mov_b32 exec_hi, 0x55555555
    buffer_store_dwordx2 v[14:15], v13, s[48:51], s46 offen
    buffer_store_dwordx2 v[14:15], v13, s[48:51], s45 offen sc1
    """)
    sig_add(F_TC)
    stamp(3)
    a("L_k:")
    a.c("---- K fragments, scores")
    a(f"""
    v_and_b32 v11, 6, v6
    v_xor_b32 v11, v11, v5
    v_lshlrev_b32 v11, 4, v11
    v_and_b32 v12, 7, v6
    v_lshl_add_u32 v11, v12, 7, v11
    v_lshrrev_b32 v12, 3, v6
    v_lshl_add_u32 v11, v12, 12, v11
    s_lshl_b32 s46, s3, 13
    v_add_u32 v11, s46, v11
    v_xor_b32 v12, 64, v11
    s_lshl_b32 s46, s3, 1
    s_add_u32 s46, s46, s64
    s_add_u32 s46, s46, 2
    """)
    lds_wait(F_PROG, "s46", sleep=1)
    for t in range(8):
        a(f"ds_read_b128 {vr(KR+4*t,4)}, v{11+(t&1)} offset:{(t>>1)*1024}")
    a(f"""
    v_and_b32 v11, 1, v0
    v_lshlrev_b32 v12, 8, v11
    v_lshl_add_u32 v12, v5, 3, v12
    s_lshl_b32 s46, s3, 5
    s_add_u32 s46, s46, {L_SL}
    v_add_u32 v12, s46, v12
    v_mul_u32_u24 v11, {QLS}, v11
    v_lshl_add_u32 v11, v5, 4, v11
    v_add_u32 v11, {L_QL}, v11
    v_lshlrev_b32 v13, 3, v0
    v_add_u32 v13, {L_SL}, v13
    v_lshrrev_b32 v14, 5, v0
    v_mul_u32_u24 v15, {PLS}, v14
    v_bfe_u32 v3, v0, 3, 2
    v_lshl_add_u32 v15, v3, 6, v15
    v_lshl_add_u32 v15, v8, 4, v15
    v_and_b32 v3, 4, v0
    v_lshl_add_u32 v15, v3, 1, v15
    v_add_u32 v15, {L_PL}, v15
    s_mov_b32 s57, {f2u(LOG2E/16)}
    s_waitcnt lgkmcnt(0)
    """)
    if late: sig_add(F_KC)
    stamp(1)
    lds_wait(F_Q, 1, sleep=1)
    stamp(4)
    for t in range(8):
        a(f"ds_read_b128 {vr(QR+4*t,4)}, v11 offset:{t*64}")
    a(f"ds_read_b32 v3, v1 offset:{F_FAST}")
    for t in range(8):
        a(f"s_waitcnt lgkmcnt({8-t})")
        a(f"v_mfma_f32_16x16x32_bf16 v[80:83], {vr(KR+4*t,4)}, {vr(QR+4*t,4)}, {'0' if t==0 else 'v[80:83]'}")
    a(f"""
    v_cvt_pk_bf16_f32 v84, v80, v81
    v_cvt_pk_bf16_f32 v85, v82, v83
    s_mov_b32 exec_lo, 0x00030003
    s_mov_b32 exec_hi, 0x00030003
    ds_write_b64 v12, v[84:85]
    s_waitcnt lgkmcnt(0)
    v_readfirstlane_b32 s65, v3
    """)
    sig_add(F_S)
    stamp(5)
    a(f"""
    v_lshrrev_b32 v32, 3, v6
    v_mul_u32_u24 v32, {PLS}, v32
    v_lshl_add_u32 v32, v5, 4, v32
    v_add_u32 v32, {L_PL}, v32
    v_lshrrev_b32 v38, 3, v9
    v_lshlrev_b32 v38, 12, v38
    v_and_b32 v39, 7, v9
    v_lshl_add_u32 v38, v39, 7, v38
    v_lshl_add_u32 v38, v8, 3, v38
    s_lshr_b32 s46, s3, 1
    s_lshl_b32 s46, s46, 10
    s_add_u32 s46, s46, {L_B}
    v_add_u32 v38, s46, v38
    s_and_b32 s46, s3, 1
    s_lshl_b32 s46, s46, 1
    v_xor_b32 v39, s46, v10
    v_xor_b32 v40, 1, v39
    v_lshl_add_u32 v39, v39, 5, v38
    v_lshl_add_u32 v40, v40, 5, v38
    v_lshrrev_b32 v41, 1, v5
    v_lshlrev_b32 v41, 16, v41
    v_lshl_add_u32 v41, v6, 4, v41
    s_lshl_b32 s46, s40, 3
    s_lshr_b32 s47, s3, 1
    s_add_u32 s46, s46, s47
    s_lshl_b32 s46, s46, 14
    s_lshl_b32 s47, s41, 9
    s_add_u32 s46, s46, s47
    s_and_b32 s47, s3, 1
    s_lshl_b32 s47, s47, 8
    s_add_u32 s46, s46, s47
    s_add_u32 s58, s46, {OBUF}
    """)
    lds_wait(F_S, 8)
    a(f"""
    ds_read_b64 v[88:89], v13
    s_waitcnt lgkmcnt(0)
    v_lshlrev_b32 v92, 16, v88
    v_and_b32 v93, 0xffff0000, v88
    v_lshlrev_b32 v94, 16, v89
    v_and_b32 v95, 0xffff0000, v89
    v_max_f32 v96, v92, v93
    v_max3_f32 v96, v96, v94, v95
    """)
    red("v_max_f32", [96], ROR(8, 4, 2, 1) + ["x16"], [97])
    for i in range(4): a(f"v_sub_f32 v{92+i}, v{92+i}, v96")
    for i in range(4): a(f"v_mul_f32 v{92+i}, s57, v{92+i}")
    for i in range(4): a(f"v_exp_f32 v{92+i}, v{92+i}")
    a(f"""
    v_add_f32 v98, v92, v93
    v_add_f32 v99, v94, v95
    v_cvt_pk_bf16_f32 v92, v92, v93
    v_cvt_pk_bf16_f32 v93, v94, v95
    v_add_f32 v98, v98, v99
    ds_write_b64 v15, v[92:93]
    s_cmp_lg_u32 s3, 0
    s_cbranch_scc1 L_nostat
    """)
    red("v_add_f32", [98], ROR(8, 4, 2, 1) + ["x16"], [97])
    a(f"""
    v_mov_b32 v97, s{S_TAG}
    v_mov_b32 v99, s{S_TAG}
    v_lshlrev_b32 v14, 9, v14
    s_lshl_b32 s46, s40, 10
    s_lshl_b32 s47, s41, 4
    s_add_u32 s46, s46, s47
    s_add_u32 s46, s46, {STB}
    s_mov_b32 exec_lo, 1
    s_mov_b32 exec_hi, 1
    """)
    store_near("buffer_store_dwordx4 v[96:99], v14, s[48:51], s46 offen")
    a("s_mov_b64 exec, -1\nL_nostat:\ns_waitcnt lgkmcnt(0)")
    PR = 16
    for t in range(4):
        a(f"ds_read_b128 {vr(PR+4*t,4)}, v32 offset:{t*64}")
    stamp(6)
    a(f"""
    v_mov_b32 v89, s{S_TAG}
    v_mov_b32 v91, s{S_TAG}
    v_lshlrev_b32 v11, 9, v5
    v_lshl_add_u32 v11, v6, 4, v11
    s_lshl_b32 s45, s61, 14
    s_lshr_b32 s46, s3, 1
    s_lshl_b32 s47, s46, 12
    s_add_u32 s45, s45, s47
    s_and_b32 s47, s3, 1
    s_lshl_b32 s47, s47, 8
    s_add_u32 s45, s45, s47
    s_add_u32 s66, s45, {OBUF}
    s_lshr_b32 s45, s61, 2
    s_lshl_b32 s45, s45, 9
    s_lshl_b32 s47, s46, 7
    s_add_u32 s45, s45, s47
    s_add_u32 s67, s45, {STB}
    v_lshlrev_b32 v12, 4, v5
    s_mul_i32 s46, s46, {ALS}
    s_and_b32 s47, s3, 1
    s_lshl_b32 s47, s47, 6
    s_add_u32 s46, s46, s47
    s_add_u32 s46, s46, {L_AL}
    v_lshlrev_b32 v13, 4, v7
    v_lshl_add_u32 v13, v8, 1, v13
    v_lshrrev_b32 v14, 5, v0
    v_lshl_add_u32 v13, v14, 3, v13
    v_add_u32 v13, s46, v13
    s_add_u32 s56, s64, 20
    """)
    a(f"s_cmp_eq_u32 s60, {T_DN}\ns_cbranch_scc1 L_ojob\nL_q:")
    STL = ["buffer_load_dwordx4 v[48:51], v12, s[48:51], s67 offen sc1", "buffer_load_dwordx4 v[52:55], v12, s[48:51], s67 offen offset:64 sc1"]
    for t in range(4):
        if t == 0 and not o["nopoll"]:
            a.c("touch the hand-off lines once so that the later polls hit this XCD's L2")
            a(f"s_cmp_eq_u32 s60, {T_WO}\ns_cbranch_scc0 L_nowarm\nbuffer_load_dword v58, v11, s[48:51], s66 offen sc1\nbuffer_load_dword v59, v11, s[48:51], s66 offen offset:2048 sc1\nL_nowarm:")
        if t == 3 and not o["nopoll"]:
            a(f"s_cmp_eq_u32 s60, {T_WO}\ns_cbranch_scc0 L_nostl\n" + "\n".join(STL) + "\nL_nostl:")
        if t == 3 and o["hint"]:
            a.c("wave 7 marks this workgroup as (nearly) loaded: an early notice for the final reducers")
            a(f"s_cmp_eq_u32 s3, 7\ns_cbranch_scc0 L_nomark\ns_sub_u32 s46, s56, {o['lead']}\ns_lshl_b32 s47, s40, 7\ns_add_u32 s47, s47, {AG}\ns_lshl_b32 s45, s41, 2\nv_mov_b32 v60, s45")
            if o["lead"] >= 0:
                lds_wait(F_PROG, "s46")
                a("s_mov_b64 exec, 1")
                store_near("buffer_store_dword v89, v60, s[48:51], s47 offen")
            a("s_mov_b64 exec, -1\nL_nomark:")
        lds_wait(F_PROG, "s56", sleep=1 if t < 3 else 0)
        a(f"""
        ds_read_b64_tr_b16 v[92:93], v39 offset:{t*16384}
        ds_read_b64_tr_b16 v[94:95], v39 offset:{t*16384+8192}
        ds_read_b64_tr_b16 v[96:97], v40 offset:{t*16384}
        ds_read_b64_tr_b16 v[98:99], v40 offset:{t*16384+8192}
        """)
        if t < 3: a("s_add_u32 s56, s56, 4")
        else: a("s_mov_b32 exec_lo, 0xffff\ns_mov_b32 exec_hi, 0xffff" if False else "s_mov_b32 s56, 0")
        a(f"""
        s_waitcnt lgkmcnt(2)
        v_mfma_f32_16x16x32_bf16 v[80:83], {vr(PR+4*t,4)}, v[92:95], {'0' if t==0 else 'v[80:83]'}
        s_waitcnt lgkmcnt(0)
        v_mfma_f32_16x16x32_bf16 v[84:87], {vr(PR+4*t,4)}, v[96:99], {'0' if t==0 else 'v[84:87]'}
        """)
    a("s_mov_b32 exec_lo, 0xffff\ns_mov_b32 exec_hi, 0xffff\nv_mov_b32 v88, v80\nv_mov_b32 v90, v84")
    store_near("buffer_store_dwordx4 v[88:91], v41, s[48:51], s58 offen")
    if o["hint"] and o["lead"] < 0:
        a("s_cmp_eq_u32 s3, 7\ns_cbranch_scc0 L_nomark2\ns_mov_b64 exec, 1")
        store_near("buffer_store_dword v89, v60, s[48:51], s47 offen")
        a("L_nomark2:")
    a("s_mov_b64 exec, -1")
    stamp(7)
    a(f"s_cmp_eq_u32 s60, {T_WO}\ns_cbranch_scc0 L_adone")
    a.c("---- combine the 8 key chunks for this wo tile (loader and helper end by then: s_barrier joins the 8 waves)")
    def BL(r): return f"buffer_load_dwordx4 v[{r}:{r+3}], v11, s[48:51], s66 offen sc1\nbuffer_load_dwordx4 v[{r+4}:{r+7}], v11, s[48:51], s66 offen offset:2048 sc1"
    if not o["nopoll"]:
        a(BL(92) + "\ns_waitcnt vmcnt(3)")
        chk([49, 51, 53, 55])
        a("s_cbranch_scc1 L_stretry\nL_stok:")
    a("v_max_f32 v56, v48, v52")
    red("v_max_f32", [56], ["x16", "x32"], [57])
    a(f"""
    v_sub_f32 v14, v48, v56
    v_sub_f32 v15, v52, v56
    v_mul_f32 v14, s57, v14
    v_mul_f32 v15, s57, v15
    v_exp_f32 v14, v14
    v_exp_f32 v15, v15
    s_mov_b32 s13, 0x2000
    v_mul_f32 v56, v14, v50
    v_fmac_f32 v56, v15, v54
    """)
    red("v_add_f32", [56], ["x16", "x32"], [57])
    a("v_rcp_f32 v56, v56\nv_mul_f32 v14, v14, v56\nv_mul_f32 v15, v15, v56")
    if not o["nopoll"]:
        a("L_bchk:\ns_waitcnt vmcnt(0)")
        chk([93, 95, 97, 99])
        a("s_cbranch_scc0 L_bok\n" + BL(92))
        if late:
            a.c("late half of the tile already in LDS? then fetch its operands while the poll is in flight")
            a(f"s_cmp_lg_u32 s56, 0\ns_cbranch_scc1 L_bnext\nds_read_b32 v2, v1 offset:{F_PROG}\ns_waitcnt lgkmcnt(0)\nv_cmp_le_i32 vcc, {KB_WO+40}, v2\ns_cbranch_vccz L_bnext\ns_mov_b32 s56, 1")
            wread(100, 1, 0)
            a("L_bnext:")
        a("s_sub_u32 s13, s13, 1\ns_cbranch_scc0 L_bchk\nL_bok:")
    stamp(8)
    a(f"""
    v_mul_f32 v92, v92, v14
    v_mul_f32 v94, v94, v14
    v_fmac_f32 v92, v96, v15
    v_fmac_f32 v94, v98, v15
    v_permlane32_swap_b32 v92, v94
    v_add_f32 v92, v92, v94
    """)
    red("v_add_f32", [92], ["x16"], [93])
    a("v_cvt_pk_bf16_f32 v92, v92, v92\nds_write_b16 v13, v92")
    if late:
        a("s_cmp_lg_u32 s56, 0\ns_cbranch_scc1 L_lateok")
        lds_wait(F_PROG, KB_WO + 40)
        wread(100, 1, 0)
        a("L_lateok:")
    a(f"""
    s_waitcnt lgkmcnt(0)
    s_barrier
    s_cmp_eq_u32 s3, 7
    s_cbranch_scc1 L_adone
    L_ojob2:
    """)
    a.c("---- out job: a[4x64] x W[64x448], 64 columns per wave")
    stamp(9)
    a("ds_read_b128 v[92:95], v101\nds_read_b128 v[96:99], v101 offset:64\ns_waitcnt lgkmcnt(1)")
    for jt in range(4):
        a(f"v_mfma_f32_16x16x32_bf16 {vr(48+4*jt,4)}, v[92:95], {vr(WB+4*jt,4)}, 0")
    a("s_waitcnt lgkmcnt(0)")
    for jt in range(4):
        a(f"v_mfma_f32_16x16x32_bf16 {vr(48+4*jt,4)}, v[96:99], {vr(WB+16+4*jt,4)}, {vr(48+4*jt,4)}")
    for jt in range(4):
        a(f"v_perm_b32 v{64+jt}, v{48+4*jt}, v103, s{4+jt}")
    a("buffer_store_dwordx4 v[64:67], v102, s[48:51], s59 offen sc1")
    stamp(10)
    a(f"s_cmp_eq_u32 s60, {T_DN}\ns_cbranch_scc1 L_q\nL_adone:")
    if stamps:
        i8 = 72 + 2 * used.index(8); i7 = 72 + 2 * used.index(7)
        a(f"s_waitcnt lgkmcnt(0)\ns_add_u32 s10, s38, {STAMP_OFF}\ns_addc_u32 s11, s39, 0\ns_mul_i32 s12, s2, {NST*8}\ns_lshl_b32 s13, s3, 3\ns_add_u32 s12, s12, s13\nv_mov_b32 v1, s12\ns_mov_b64 exec, 1")
        a(f"v_mov_b32 v2, s{i8}\nv_mov_b32 v3, s{i8+1}\nglobal_store_dwordx2 v1, v[2:3], s[10:11] offset:{8*28}\ns_nop 1")
        a(f"v_mov_b32 v2, s{i7}\nv_mov_b32 v3, s{i7+1}\nglobal_store_dwordx2 v1, v[2:3], s[10:11] offset:{8*36}\ns_nop 1")
        a("s_cmp_lg_u32 s3, 0\ns_cbranch_scc1 L_exit")
        flush_stamps()
    a("s_endpgm")
    a("L_ojob:\ns_cmp_eq_u32 s3, 7\ns_cbranch_scc1 L_q")
    lds_wait(F_A, 8, sleep=1)
    a("s_branch L_ojob2")
    if not o["nopoll"]:
        a("L_stretry:")
        poll(STL, [49, 51, 53, 55])
        a("s_branch L_stok")

    a.c("======== helper wave (wave 1): layernorm, hand-off gathers, final reduction")
    a("L_helper:\ns_setprio 3")
    srd(52, 16, 3584)
    a(f"""
    s_getreg_b32 s65, hwreg(HW_REG_XCC_ID, 0, 4)
    s_cmp_eq_u32 s60, {T_P}
    s_cbranch_scc0 L_noln
    v_mul_u32_u24 v9, 896, v5
    v_lshl_add_u32 v9, v6, 3, v9
    """)
    XR = 16; U = 32
    for u in range(7):
        a(f"buffer_load_dwordx2 {vr(XR+2*u,2)}, v9, s[52:55], 0 offen offset:{u*128}")
    a(f"""
    v_mul_u32_u24 v9, {XNS}, v5
    v_lshrrev_b32 v10, 3, v6
    v_lshl_add_u32 v9, v10, 6, v9
    v_lshl_add_u32 v9, v8, 4, v9
    v_and_b32 v10, 4, v6
    v_lshl_add_u32 v9, v10, 1, v9
    v_add_u32 v9, {L_XN}, v9
    s_waitcnt vmcnt(0)
    """)
    for u in range(14):
        a(f"v_lshlrev_b32 v{U+2*u}, 16, v{XR+u}\nv_and_b32 v{U+2*u+1}, 0xffff0000, v{XR+u}")
    a(f"v_pk_add_f32 v[60:61], v[{U}:{U+1}], v[{U+2}:{U+3}]")
    for u in range(2, 14):
        a(f"v_pk_add_f32 v[60:61], v[60:61], v[{U+2*u}:{U+2*u+1}]")
    a("v_add_f32 v60, v60, v61")
    red("v_add_f32", [60], ROR(8, 4, 2, 1))
    a(f"v_mul_f32 v60, {f2u(1/448)}, v60\nv_mov_b32 v61, v60")
    for u in range(14):
        a(f"v_pk_add_f32 v[64:65], v[{U+2*u}:{U+2*u+1}], v[60:61] neg_lo:[0,1] neg_hi:[0,1]")
        a("v_pk_mul_f32 v[62:63], v[64:65], v[64:65]" if u == 0 else "v_pk_fma_f32 v[62:63], v[64:65], v[64:65], v[62:63]")
    a("v_add_f32 v62, v62, v63")
    red("v_add_f32", [62], ROR(8, 4, 2, 1))
    a(f"v_mul_f32 v62, {f2u(1/448)}, v62")
    round_bf16(62, 62)
    a(f"v_add_f32 v62, {f2u(1e-5)}, v62")
    round_bf16(62, 62)
    a("v_sqrt_f32 v62, v62")
    round_bf16(62, 62)
    a("v_rcp_f32 v62, v62")
    round_bf16(60, 60)
    a("v_mov_b32 v61, v60\nv_mov_b32 v63, v62")
    for u in range(14):
        a(f"v_pk_add_f32 v[64:65], v[{U+2*u}:{U+2*u+1}], v[60:61] neg_lo:[0,1] neg_hi:[0,1]")
        a(f"v_cvt_pk_bf16_f32 v64, v64, v65\nv_and_b32 v65, 0xffff0000, v64\nv_lshlrev_b32 v64, 16, v64")
        a(f"v_pk_mul_f32 v[64:65], v[64:65], v[62:63]\nv_cvt_pk_bf16_f32 v{XR+u}, v64, v65")
    for u in range(7):
        a(f"ds_write_b64 v9, {vr(XR+2*u,2)} offset:{u*128}")
    a("s_waitcnt lgkmcnt(0)")
    sig_set(F_XN, 1)
    a("L_noln:")
    stamp(16)
    get_tag()
    if o["sched"]:
        a.c("earliest start among the XCDs: one workgroup per id class publishes, everybody takes the minimum of what is there")
        a(f"""
        s_cmp_eq_u32 s41, 8
        s_cbranch_scc0 L_notb
        v_mov_b32 v16, s70
        v_mov_b32 v17, s{S_TAG}
        s_lshl_b32 s45, s40, 7
        v_mov_b32 v18, s45
        s_mov_b32 s45, {TB}
        s_mov_b64 exec, 1
        buffer_store_dwordx2 v[16:17], v18, s[48:51], s45 offen sc1
        s_mov_b64 exec, -1
        L_notb:
        s_add_u32 s4, s38, {TB}
        s_addc_u32 s5, s39, 0
        """)
        for i in range(8): a(f"s_load_dwordx2 s[{16+2*i}:{17+2*i}], s[4:5], {128*i}")
        a("s_mov_b32 s6, 0\ns_waitcnt lgkmcnt(0)")
        for i in range(8):
            a(f"s_sub_u32 s7, s{16+2*i}, s70\ns_cmp_eq_u32 s{17+2*i}, s{S_TAG}\ns_cselect_b32 s7, s7, 0\ns_min_i32 s6, s6, s7")
        a("s_max_i32 s6, s6, -300\ns_add_u32 s6, s6, s70")
        sig_set(F_T0, "s6")
    a(f"""
    s_lshl_b32 s58, s40, 7
    s_add_u32 s58, s58, {XB}
    v_lshlrev_b32 v10, 3, v0
    s_cmp_eq_u32 s60, {T_WO}
    s_cbranch_scc0 L_noxb
    v_mov_b32 v16, s65
    v_mov_b32 v17, s{S_TAG}
    s_lshl_b32 s45, s43, 3
    v_mov_b32 v18, s45
    s_mov_b64 exec, 1
    buffer_store_dwordx2 v[16:17], v18, s[48:51], s58 offen sc1
    s_mov_b64 exec, -1
    L_noxb:
    s_sub_u32 s59, s2, 128
    s_and_b32 s45, s59, 3
    s_lshr_b32 s46, s59, 2
    s_mul_i32 s47, s45, 28
    s_add_u32 s47, s47, s46
    s_lshl_b32 s66, s47, 12
    s_mul_i32 s45, s45, 896
    s_lshr_b32 s47, s46, 2
    s_lshl_b32 s47, s47, 7
    s_add_u32 s45, s45, s47
    s_and_b32 s46, s46, 3
    s_lshl_b32 s46, s46, 3
    s_add_u32 s63, s45, s46
    v_and_b32 v12, 1, v5
    v_lshlrev_b32 v12, 6, v12
    v_lshrrev_b32 v13, 1, v5
    v_lshl_add_u32 v12, v13, 5, v12
    v_lshl_add_u32 v12, v8, 1, v12
    s_mul_i32 s45, s42, {RB_B}
    s_lshl_b32 s46, s40, 11
    s_add_u32 s45, s45, s46
    s_add_u32 s45, s45, {RBUF}
    v_lshlrev_b32 v9, 4, v0
    v_add_u32 v11, {L_QL}, v10
    s_add_u32 s47, s45, {RNEAR-RBUF}
    """)
    lds_wait(F_PROG, o["qa"], sleep=2)
    stamp(22)
    if not o["nopoll"]:
        a.c("q: a few rounds on the copy that same-XCD producers make visible through L2, then the write-through copy")
        a(f"""
        s_mov_b32 s13, {o['qrounds']}
        s_mov_b32 s12, 0x2000
        L_qpoll:
        s_mov_b64 exec, 0xff
        buffer_load_dwordx2 v[24:25], v10, s[48:51], s58 offen sc1
        s_mov_b64 exec, -1
        buffer_load_dwordx4 v[16:19], v9, s[48:51], s47 offen sc1
        buffer_load_dwordx4 v[20:23], v9, s[48:51], s47 offen offset:1024 sc1
        s_sub_u32 s13, s13, 1
        s_cselect_b32 s47, s45, s47
        s_waitcnt vmcnt(0)
        """)
        chk([17, 19, 21, 23])
        a("s_cbranch_scc0 L_gotq\ns_sleep 4\ns_sub_u32 s12, s12, 1\ns_cbranch_scc0 L_qpoll")
    a(f"""
    L_gotq:
    ds_write2_b32 v11, v16, v18 offset0:0 offset1:1
    ds_write2_b32 v11, v20, v22 offset0:{QLS//4} offset1:{QLS//4+1}
    v_cmp_eq_u32 vcc, s{S_TAG}, v25
    v_cmp_eq_u32 s[10:11], s65, v24
    s_and_b32 s10, s10, vcc_lo
    s_and_b32 s10, s10, 0xff
    s_cmp_eq_u32 s10, 0xff
    s_cselect_b32 s10, {o['fast']}, 0
    """)
    sig_set(F_FAST, "s10")
    a("s_waitcnt lgkmcnt(0)")
    sig_set(F_Q, 1)
    stamp(17)
    a(f"s_cmp_eq_u32 s60, {T_DN}\ns_cbranch_scc0 L_nodn")
    a(f"""
    v_mul_u32_u24 v14, {RB_B}, v5
    v_lshl_add_u32 v14, v6, 4, v14
    s_lshl_b32 s46, s61, 8
    s_add_u32 s46, s46, {RBUF+64*256}
    s_add_u32 s47, s46, {28*256}
    v_mul_u32_u24 v15, {ALS}, v5
    v_lshrrev_b32 v30, 3, v6
    v_lshl_add_u32 v15, v30, 6, v15
    v_lshl_add_u32 v15, v8, 4, v15
    v_bfe_u32 v30, v6, 2, 1
    v_lshl_add_u32 v15, v30, 3, v15
    v_add_u32 v15, {L_AL}, v15
    """)
    lds_wait(F_PROG, o["h_at"], sleep=2)
    poll(["buffer_load_dwordx4 v[32:35], v14, s[48:51], s46 offen sc1",
          "buffer_load_dwordx4 v[36:39], v14, s[48:51], s47 offen sc1"], [33, 35, 37, 39], sleep=o["rsleep"])
    for i, (gq, uq) in enumerate(((32, 36), (34, 38))):
        a(f"""
        v_lshlrev_b32 v40, 16, v{gq}
        v_and_b32 v41, 0xffff0000, v{gq}
        v_lshlrev_b32 v42, 16, v{uq}
        v_and_b32 v43, 0xffff0000, v{uq}
        v_max_f32 v40, 0, v40
        v_max_f32 v41, 0, v41
        v_mul_f32 v40, v40, v42
        v_mul_f32 v41, v41, v43
        v_cvt_pk_bf16_f32 v{28+i}, v40, v41
        """)
    a("ds_write_b64 v15, v[28:29]\ns_waitcnt lgkmcnt(0)")
    sig_set(F_A, 8)
    a("L_nodn:")
    stamp(18)
    if o["hint"] and not o["nopoll"]:
        a(f"""
        s_cmp_lt_u32 s2, 8
        s_cbranch_scc0 L_noagg
        s_lshl_b32 s46, s40, 7
        s_add_u32 s47, s46, {HC}
        s_add_u32 s46, s46, {AG}
        v_and_b32 v14, 31, v0
        v_lshlrev_b32 v14, 2, v14
        v_lshlrev_b32 v15, 10, v0
        v_mov_b32 v17, s{S_TAG}
        """)
        lds_wait(F_PROG, 14 + o["aggat"], sleep=2)
        a(f"""
        s_mov_b32 s12, 0x4000
        L_agg:
        buffer_load_dword v16, v14, s[48:51], s46 offen sc1
        s_waitcnt vmcnt(0)
        v_cmp_ne_u32 vcc, s{S_TAG}, v16
        s_cbranch_vccz L_aggok
        s_sub_u32 s12, s12, 1
        s_cbranch_scc0 L_agg
        L_aggok:
        s_mov_b64 exec, 0xff
        buffer_store_dword v17, v15, s[48:51], s47 offen sc1
        s_mov_b64 exec, -1
        L_noagg:
        """)
    a(f"""
    s_cmp_lt_u32 s59, 112
    s_cbranch_scc0 L_hdone
    buffer_load_ushort v13, v12, s[52:55], s63 offen
    s_add_u32 s46, s66, {YBUF}
    s_add_u32 s45, s66, {FBUF}
    s_mov_b32 s4, 0x0c0c0400
    s_mov_b32 s5, 0x0c040100
    s_mov_b32 s6, 0x04020100
    s_and_b32 s7, s{S_TAG}, 0xff
    v_mov_b32 v20, s7
    s_bfe_u32 s7, s{S_TAG}, 0x80008
    v_mov_b32 v21, s7
    s_bfe_u32 s7, s{S_TAG}, 0x80010
    v_mov_b32 v22, s7
    s_lshr_b32 s7, s{S_TAG}, 24
    v_mov_b32 v23, s7
    s_add_u32 s47, s64, 32
    """)
    srd(52, 34, 3584)
    lds_wait(F_PROG, "s47", sleep=2)
    poll(["buffer_load_dwordx4 v[16:19], v9, s[48:51], s46 offen sc1", "s_mov_b32 exec_hi, 0xffff",
          "buffer_load_dwordx4 v[20:23], v9, s[48:51], s46 offen offset:1024 sc1", "s_mov_b32 exec_hi, -1"], [40, 41], sleep=4,
         pre=e4_tags([16, 20], 40))
    for k in range(4): a(f"v_add_f32 v{16+k}, v{16+k}, v{20+k}")
    red4(16)
    round_bf16(16, 16)
    a(f"v_mul_f32 v20, {f2u(-LOG2E)}, v16\nv_exp_f32 v20, v20\nv_add_f32 v20, 1.0, v20\nv_rcp_f32 v20, v20\nv_mul_f32 v16, v16, v20")
    round_bf16(16, 16)
    a("v_lshlrev_b32 v13, 16, v13")
    stamp(19)
    if o["hint"] and not o["nopoll"]:
        a(f"""
        s_and_b32 s47, s65, 7
        s_lshl_b32 s47, s47, 10
        s_add_u32 s47, s47, {HC}
        v_lshlrev_b32 v14, 7, v0
        s_mov_b32 s12, 0x1000
        s_mov_b64 exec, 0xff
        L_hint:
        buffer_load_dword v15, v14, s[48:51], s47 offen sc1
        s_waitcnt vmcnt(0)
        v_cmp_ne_u32 vcc, s{S_TAG}, v15
        s_cbranch_vccz L_hintok
        s_sub_u32 s12, s12, 1
        s_cbranch_scc0 L_hint
        L_hintok:
        s_mov_b64 exec, -1
        """)
        if o["hdelay"]: a(f"s_sleep {o['hdelay']}")
        stamp(23)
    poll([f"buffer_load_dwordx4 {vr(24+4*t,4)}, v9, s[48:51], s45 offen offset:{t*1024} sc1" for t in range(4)],
         [40, 41, 42, 43], pre=e4_tags([24, 28, 32, 36], 40))
    stamp(20)
    for k in range(4): a(f"v_add_f32 v{24+k}, v{24+k}, v{28+k}\nv_add_f32 v{32+k}, v{32+k}, v{36+k}")
    for k in range(4): a(f"v_add_f32 v{24+k}, v{24+k}, v{32+k}")
    red4(24)
    round_bf16(24, 24)
    a("v_mul_f32 v24, v24, v16")
    round_bf16(24, 24)
    a(f"""
    v_add_f32 v24, v24, v13
    v_cvt_pk_bf16_f32 v24, v24, v24
    s_mov_b32 exec_lo, 0x000f000f
    s_mov_b32 exec_hi, 0x000f000f
    buffer_store_short v24, v12, s[52:55], s63 offen {'sc1' if o['outsc1'] else ''}
    s_cmp_lg_u32 s59, 0
    s_cbranch_scc1 L_hdone
    s_mov_b64 exec, 1
    v_mov_b32 v2, s{S_TAG}
    v_mov_b32 v3, 0
    buffer_store_dword v2, v3, s[48:51], 0 offen offset:{EPOCH}
    L_hdone:
    """)
    stamp(21)
    flush_stamps()
    a("L_exit:\ns_endpgm\nL_codeend:")
    body = hazard.fix(a.text())
    return kernel_file([(NAME + "_kernel", body, 136, 100, 136)], [(NAME + "_kernel", 256, 640, LDS_BYTES)])

if __name__ == "__main__":
    out = sys.argv[1]
    kw = {}
    for x in sys.argv[2:]:
        k, v = x.split("=")
        kw[k] = (v.replace("def", "").replace("+", " ") if k.startswith("pol") else int(v))
    open(out, "w").write(gen(**kw))
```

```python
import sys, re
sys.path.insert(0, "tools")
from asmlib import *
import hazard
src, out, A, B = sys.argv[1], sys.argv[2], int(sys.argv[3]), int(sys.argv[4])
mode = sys.argv[5] if len(sys.argv) > 5 else "max"
AMP = 10; NST = 44
t = open(src).read()
m = re.search(r"; @launch grid=\((\d+),1,1\) block=\((\d+),1,1\) lds=(\d+)\n", t)
t = t.replace(m.group(0), f"; @launch kernel={NAME}_kernel grid=({m.group(1)},1,1) block=({m.group(2)},1,1) lds={m.group(3)}\n; @launch kernel=amp_kernel grid=(1,1,1) block=(64,1,1) lds=0\n")
a = Asm()
DPP = "row_mask:0xf bank_mask:0xf"
a(f"""
s_cmp_ge_u32 s2, 1
s_cbranch_scc1 L9_end
s_load_dwordx2 s[8:9], s[0:1], 88
s_memrealtime s[20:21]
v_mul_u32_u24 v1, {NST*8}, v0
s_waitcnt lgkmcnt(0)
s_add_u32 s8, s8, {128<<20}
s_addc_u32 s9, s9, 0
""")
for i in range(4):
    a(f"global_load_dword v{4+i}, v1, s[8:9] offset:{8*A}\nglobal_load_dword v{8+i}, v1, s[8:9] offset:{8*B}\nv_add_u32 v1, {64*NST*8}, v1")
a("s_waitcnt vmcnt(0)")
for i in range(4): a(f"v_subrev_u32 v{4+i}, s20, v{4+i}\nv_subrev_u32 v{8+i}, s20, v{8+i}")
opB = "v_max_i32" if mode == "max" else "v_min_i32"
a(f"v_min_i32 v4, v4, v5\nv_min_i32 v6, v6, v7\nv_min_i32 v4, v4, v6\n{opB} v8, v8, v9\n{opB} v10, v10, v11\n{opB} v8, v8, v10")
for r in (8, 4, 2, 1):
    a(f"v_min_i32_dpp v4, v4, v4 row_ror:{r} {DPP}\n{opB}_dpp v8, v8, v8 row_ror:{r} {DPP}")
for sw in ("v_permlane16_swap_b32", "v_permlane32_swap_b32"):
    a(f"v_mov_b32 v5, v4\nv_mov_b32 v9, v8\n{sw} v4, v5\n{sw} v8, v9\nv_min_i32 v4, v4, v5\n{opB} v8, v8, v9")
a(f"""
v_sub_u32 v4, v8, v4
v_min_u32 v4, 5000, v4
v_readfirstlane_b32 s10, v4
s_mul_i32 s10, s10, {AMP}
s_memrealtime s[20:21]
s_waitcnt lgkmcnt(0)
s_add_u32 s10, s10, s20
L9_spin:
s_memrealtime s[22:23]
s_waitcnt lgkmcnt(0)
s_sub_u32 s11, s22, s10
s_cmp_lt_i32 s11, 0
s_cbranch_scc1 L9_spin
L9_end:
s_endpgm
""")
t = t.replace('.section .rodata,"a"\n', ".globl amp_kernel\n.p2align 8\n.type amp_kernel,@function\namp_kernel:\n" + hazard.fix(a.text()) + '.section .rodata,"a"\n')
t += """.p2align 6
.amdhsa_kernel amp_kernel
  .amdhsa_next_free_vgpr 16
  .amdhsa_next_free_sgpr 32
  .amdhsa_accum_offset 16
  .amdhsa_group_segment_fixed_size 0
  .amdhsa_kernarg_size 96
  .amdhsa_user_sgpr_count 2
  .amdhsa_user_sgpr_kernarg_segment_ptr 1
  .amdhsa_system_sgpr_workgroup_id_x 1
.end_amdhsa_kernel
"""
open(out, "w").write(t)
```

```python
import sys, struct
sys.path.insert(0, "tools")
from asmlib import *
import hazard

EPOCH = 0
RBUF = 0x1000; RB_B = 120 * 256
RNEAR = 0x40000
STB = 0x20000
TB = 0x26000
AG = 0x27000
HC = 0x28000
XB = 0x24000
OBUF = 0x100000
FBUF = 0x200000
YBUF = 0x280000
WS_REC = 0x400000
STAMP_OFF = 128 << 20
L_A = 0; L_B = 65536; OS = 928
L_XN = 131072; XNS = 912
L_QL = L_XN + 4 * XNS; QLS = 544
L_SL = L_QL + 2 * QLS
L_PL = L_SL + 512; PLS = 288
L_AL = L_PL + 2 * PLS; ALS = 144
L_FLAG = L_AL + 4 * ALS
LDS_BYTES = L_FLAG + 256
F_XN, F_Q, F_PROG, F_KC, F_TC, F_S, F_A, F_FAST, F_T0 = 0, 4, 8, 12, 16, 20, 24, 28, 32
LOG2E = 1.4426950408889634
def f2u(x): return "0x%08x" % struct.unpack("<I", struct.pack("<f", x))[0]
T_NONE, T_P, T_WO, T_DN = 0, 1, 2, 3
DEF = dict(lagQ=28, lagT=16, lagTw=16, lagKb=20, lagKw=20, lagKs=12, lagVb=28, lagVw=28, lagVs=12, lagL=40, pol_kv="nt", pol_w="nt", stamps=0, prefetch=1,
           nopoll=0, fast=1, q_wq=24, q_gu=20, q_dn=22, q_wo=19, q_no=18, outsc1=0, rsleep=16, late=0, pipeb=0, rot=4, sched=1, D=800, t1=150, tq=210, lagLo=12, lagHi=32, qa=6, qrounds=6, h_at=18, hint=1, lead=-1, aggat=26, hdelay=0, warm=2, warmat=12, maskb=1, Dwo=0, nlev=2, lstep=20, linc=8, tb2at=2, pol_n="sc1", nofar=0)

def gen(**kw):
    o = dict(DEF); o.update(kw)
    stamps = o["stamps"]; NST = 44; pol_kv = o["pol_kv"]; pol_w = o["pol_w"]; late = o["late"]
    assert pol_kv == pol_w
    a = Asm()
    S_TAG = 15
    used = []
    def stamp(k):
        if stamps:
            a(f"s_memrealtime s[{72+2*len(used)}:{73+2*len(used)}]"); used.append(k)
    def zero_stamps():
        if stamps:
            for i in range(13): a(f"s_mov_b64 s[{72+2*i}:{73+2*i}], 0")
    def flush_stamps():
        if stamps and used:
            a(f"s_waitcnt lgkmcnt(0)\ns_add_u32 s10, s38, {STAMP_OFF}\ns_addc_u32 s11, s39, 0\ns_mul_i32 s12, s2, {NST*8}\nv_mov_b32 v1, s12\ns_mov_b64 exec, 1")
            for i, k in enumerate(used):
                a(f"v_mov_b32 v2, s{72+2*i}\nv_mov_b32 v3, s{73+2*i}\nglobal_store_dwordx2 v1, v[2:3], s[10:11] offset:{8*k}\ns_nop 1")
        used.clear()
    def srd(reg, ptr, size):
        a(f"s_mov_b32 s{reg}, s{ptr}\ns_mov_b32 s{reg+1}, s{ptr+1}\ns_mov_b32 s{reg+2}, {size}\ns_mov_b32 s{reg+3}, 0x20000")
    def lds_wait(off, need, sleep=0):
        l = a.label("lw"); d = a.label("lwd")
        a(f"s_mov_b32 s12, 0x20000\n{l}:\nds_read_b32 v2, v1 offset:{off}\ns_waitcnt lgkmcnt(0)\nv_cmp_le_i32 vcc, {need}, v2\ns_cbranch_vccnz {d}")
        if sleep: a(f"s_sleep {sleep}")
        a(f"s_sub_u32 s12, s12, 1\ns_cbranch_scc0 {l}\n{d}:")
    def sig_set(off, val):
        a(f"v_mov_b32 v2, {val}\nds_write_b32 v1, v2 offset:{off}")
    def sig_add(off):
        a(f"s_mov_b64 exec, 1\nv_mov_b32 v2, 1\nds_add_u32 v1, v2 offset:{off}\ns_mov_b64 exec, -1")
    def get_tag():
        a(f"s_waitcnt lgkmcnt(0)\ns_mul_i32 s{S_TAG}, s14, 0x9E3779B1\ns_add_u32 s{S_TAG}, s{S_TAG}, 0x632BE5AB")
    def chk(regs):
        a(f"v_cmp_ne_u32 vcc, s{S_TAG}, v{regs[0]}")
        for t in regs[1:]: a(f"v_cmp_ne_u32 s[10:11], s{S_TAG}, v{t}\ns_or_b64 vcc, vcc, s[10:11]")
    def poll(loads, tagregs, sleep=0, pre=None):
        if o["nopoll"]: return
        l = a.label("pl"); d = a.label("pld")
        a(f"s_mov_b32 s12, 0x2000\n{l}:")
        for x in loads: a(x)
        a("s_waitcnt vmcnt(0)")
        if pre: a(pre)
        chk(tagregs)
        a(f"s_cbranch_scc0 {d}")
        if sleep: a(f"s_sleep {sleep}")
        a(f"s_sub_u32 s12, s12, 1\ns_cbranch_scc0 {l}\n{d}:")
    DPP = "row_mask:0xf bank_mask:0xf"
    def red(op, vs, steps, tmps=None):
        for st in steps:
            if st in ("x16", "x32"):
                sw = "v_permlane16_swap_b32" if st == "x16" else "v_permlane32_swap_b32"
                for v, t in zip(vs, tmps): a(f"v_mov_b32 v{t}, v{v}")
                for v, t in zip(vs, tmps): a(f"{sw} v{v}, v{t}")
                for v, t in zip(vs, tmps): a(f"{op} v{v}, v{v}, v{t}")
            else:
                for v in vs: a(f"{op}_dpp v{v}, v{v}, v{v} {st} {DPP}")
    ROR = lambda *k: ["row_ror:%d" % i for i in k]
    def round_bf16(dst, src):
        a(f"v_cvt_pk_bf16_f32 v{dst}, v{src}, v{src}\nv_and_b32 v{dst}, 0xffff0000, v{dst}")
    def e4_tags(bases, dst):
        s = ""
        for i, b in enumerate(bases): s += f"v_perm_b32 v{dst+i}, v{b+1}, v{b}, s4\n"
        for i, b in enumerate(bases): s += f"v_perm_b32 v{dst+i}, v{b+2}, v{dst+i}, s5\n"
        for i, b in enumerate(bases): s += f"v_perm_b32 v{dst+i}, v{b+3}, v{dst+i}, s6\n"
        return s
    def red4(b):
        a(f"""
        v_permlane32_swap_b32 v{b}, v{b+1}
        v_permlane32_swap_b32 v{b+2}, v{b+3}
        v_add_f32 v{b}, v{b}, v{b+1}
        v_add_f32 v{b+2}, v{b+2}, v{b+3}
        v_permlane16_swap_b32 v{b}, v{b+2}
        v_add_f32 v{b}, v{b}, v{b+2}
        v_add_f32_dpp v{b}, v{b}, v{b} row_ror:4 {DPP}
        v_add_f32_dpp v{b}, v{b}, v{b} row_ror:8 {DPP}
        """)
    def store_near(instr):
        l = a.label("far"); d = a.label("st")
        a(f"s_cmp_eq_u32 s65, 0\ns_cbranch_scc1 {l}\n{instr}\ns_branch {d}\n{l}:\n{instr} sc1\n{d}:")
    KB_WO = 8 if late else 16

    a("s_cmp_ge_u32 s2, 256\ns_cbranch_scc1 L_exit")
    a("s_load_dwordx16 s[16:31], s[0:1], 0\ns_load_dwordx8 s[32:39], s[0:1], 64")
    if stamps or o["sched"]: a("s_memrealtime s[70:71]")
    if o["prefetch"]:
        a.c("pull this kernel's code into L2 as data (a quarter per workgroup, one 128-B line per lane)")
        a(f"""
        s_getpc_b64 s[4:5]
        L_pc:
        s_bfe_u32 s6, s2, 0x20003
        s_lshl_b32 s6, s6, 12
        v_lshl_add_u32 v1, v0, 7, s6
        v_min_u32 v1, L_codeend-L_pc-4, v1
        v_cmp_gt_u32 vcc, 32, v0
        s_and_saveexec_b64 s[8:9], vcc
        s_cbranch_execz L_nopf
        global_load_dword v3, v1, s[4:5]
        L_nopf:
        s_mov_b64 exec, s[8:9]
        """)
    a(f"""
    v_lshrrev_b32 v4, 6, v0
    v_and_b32 v0, 63, v0
    s_and_b32 s40, s2, 7          ; hkv
    v_readfirstlane_b32 s3, v4
    s_lshr_b32 s41, s2, 3         ; j = 8*b + c
    s_lshr_b32 s42, s2, 6         ; b
    s_and_b32 s43, s41, 7         ; c
    s_lshl_b32 s61, s40, 3
    s_add_u32 s61, s61, s43
    s_add_u32 s60, s42, 1
    s_cmp_eq_u32 s42, 0
    s_cselect_b32 s64, 14, {KB_WO}
    s_cmp_lt_u32 s42, 2
    s_cbranch_scc1 L_typed
    s_and_b32 s61, s2, 31
    s_lshr_b32 s6, s2, 5
    s_cmp_eq_u32 s6, 6
    s_cselect_b32 s60, {T_DN}, {T_P}
    s_cselect_b32 s64, 16, 14
    s_cmp_lt_u32 s61, 28
    s_cselect_b32 s7, s6, 7
    s_cmp_eq_u32 s7, 7
    s_cselect_b32 s60, {T_NONE}, s60
    s_cselect_b32 s64, 0, s64
    s_cmp_eq_u32 s7, 4
    s_cselect_b32 s6, 64, 0
    s_cmp_eq_u32 s7, 5
    s_cselect_b32 s6, 92, s6
    s_add_u32 s61, s61, s6
    L_typed:
    v_mov_b32 v1, {L_FLAG}
    v_lshrrev_b32 v5, 4, v0       ; g
    s_cmp_eq_u32 s3, 0
    s_cbranch_scc1 L_loader
    s_barrier
    s_branch L_notloader
    L_loader:
    """)
    a.c("======== loader wave (wave 0): units of 4 LDS-DMA loads, s8 = units kept in flight, F_PROG = units landed")
    sched = o["sched"]
    tauq = int(round((o["D"] - o["tq"]) * 16 / 32))
    tau = lambda U: int(round((o["D"] - o["t1"]) * 16 / U))
    lags = ([o["lagHi"], o["lagLo"]] if o["nlev"] == 2 else [o["lagLo"] + o["linc"] * i for i in range(o["nlev"] - 1, -1, -1)]) if sched else sorted({o[k] for k in ("lagQ", "lagT", "lagTw", "lagKb", "lagKw", "lagKs", "lagVb", "lagVw", "lagVs", "lagL")}, reverse=True)
    T0INIT = f"v_mov_b32 v2, s70\nds_write_b32 v1, v2 offset:{F_T0}\ns_waitcnt lgkmcnt(0)" if sched else ""
    LOOPTOP = f"s_memrealtime s[10:11]\nds_read_b32 v3, v1 offset:{F_T0}" if sched else ""
    a(f"""
    s_setprio 2
    s_mov_b32 s7, 0
    s_mov_b32 s57, {o['t1']*16}
    s_mov_b32 s59, s57
    s_mov_b32 s56, {tau(46)}
    s_cmp_eq_u32 s64, 16
    s_cselect_b32 s56, {tau(48)}, s56
    s_cmp_eq_u32 s64, 8
    s_cselect_b32 s56, {tau(40)}, s56
    s_cmp_eq_u32 s64, 0
    s_cselect_b32 s56, {tau(32)}, s56
    s_cmp_eq_u32 s60, {T_WO}
    s_cselect_b32 s56, {int(round((o['D'] + o['Dwo'] - o['t1']) * 16 / (KB_WO + 32)))}, s56
    v_lshl_add_u32 v4, v0, 2, v1
    v_mov_b32 v2, 0
    ds_write_b32 v4, v2
    v_lshlrev_b32 v9, 1, v5
    v_xor_b32 v9, v9, v0
    v_and_b32 v9, 7, v9
    v_lshlrev_b32 v9, 4, v9
    v_lshrrev_b32 v11, 3, v0
    s_mov_b32 s4, 0
    s_mov_b32 s5, 0                       ; phase
    s_mov_b32 s47, s64
    s_mov_b32 s63, 0
    s_mov_b32 s44, -1
    s_mov_b32 s55, 0x20000
    s_mov_b32 m0, {L_B}
    s_cmp_eq_u32 s60, {T_P}
    s_cbranch_scc0 L_ld_notp
    s_cmp_lt_u32 s61, 64
    s_cselect_b32 s8, {o['lagQ']//4}, {o['lagT']//4}
    s_movk_i32 s45, 3584
    s_cselect_b32 s45, 8192, s45
    s_cselect_b32 s46, 0, 64
    s_mul_i32 s54, s45, 448
    v_mad_u32_u24 v12, s45, v11, v9
    s_lshl_b32 s6, s45, 3
    s_lshl_b32 s45, s45, 5
    s_movk_i32 s9, 1024
    s_waitcnt lgkmcnt(0)
    {T0INIT}
    s_barrier
    s_cmp_lt_u32 s61, 64
    s_cselect_b32 s57, -30000, s57
    s_cselect_b32 s59, {o['tq']*16-14*tauq}, s59
    s_cselect_b32 s56, {tauq}, s56
    s_cselect_b32 s52, s22, s28
    s_cselect_b32 s53, s23, s29
    s_cmp_lt_u32 s61, 92
    s_cselect_b32 s52, s52, s30
    s_cselect_b32 s53, s53, s31
    s_cselect_b32 s46, s46, 92
    s_sub_u32 s46, s61, s46
    s_lshl_b32 s46, s46, 7
    s_branch L_ld_go
    L_ld_notp:
    s_waitcnt lgkmcnt(0)
    {T0INIT}
    s_barrier
    s_cmp_eq_u32 s60, {T_NONE}
    s_cbranch_scc1 L_ld_k
    s_mul_i32 s46, s61, {64*896}
    s_cmp_eq_u32 s60, {T_WO}
    s_cselect_b32 s8, {o['lagTw']//4}, {o['lagT']//4}
    L_ld_o:
    v_lshlrev_b32 v12, 4, v0
    s_mov_b32 s54, {4096*896}
    s_cmp_eq_u32 s60, {T_DN}
    s_cselect_b32 s52, s32, s24
    s_cselect_b32 s53, s33, s25
    s_cselect_b32 s54, {1792*896}, s54
    s_movk_i32 s6, 896
    s_movk_i32 s45, 3584
    s_movk_i32 s9, {OS}
    s_mov_b32 exec_hi, 0x00ffffff
    L_ld_go:
    v_add_u32 v13, s6, v12
    v_add_u32 v14, s6, v13
    v_add_u32 v15, s6, v14
    L_ld_loop:
    {LOOPTOP}
    s_add_u32 s62, s46, s63
    buffer_load_dwordx4 v12, s[52:55], s62 offen {pol_kv} lds
    s_add_u32 m0, m0, s9
    s_add_u32 s4, s4, 1
    buffer_load_dwordx4 v13, s[52:55], s62 offen {pol_kv} lds
    s_add_u32 m0, m0, s9
    s_mul_i32 s58, s7, s56
    buffer_load_dwordx4 v14, s[52:55], s62 offen {pol_kv} lds
    s_add_u32 m0, m0, s9
    s_add_u32 s58, s58, s57               ; time (x16) by which the landed units were due
    buffer_load_dwordx4 v15, s[52:55], s62 offen {pol_kv} lds
    s_add_u32 m0, m0, s9
    s_add_u32 s46, s46, s45
    s_and_b32 s46, s46, s44
    """)
    if sched:
        a.c("behind the common schedule (a late XCD, a long job): keep more loads in flight, else fewer")
        a(f"""
        s_waitcnt lgkmcnt(0)
        v_readfirstlane_b32 s11, v3
        s_sub_u32 s10, s10, s11
        s_lshl_b32 s10, s10, 4
        """)
        if o["nlev"] == 2:
            a(f"s_cmp_gt_i32 s10, s58\ns_cselect_b32 s8, {o['lagHi']//4}, {o['lagLo']//4}")
        else:
            sh = max(1, (o["lstep"] * 16).bit_length() - 1)
            a(f"s_sub_u32 s10, s10, s58\ns_add_u32 s10, s10, {(1 << sh) - 1}\ns_ashr_i32 s10, s10, {sh}\ns_max_i32 s10, s10, 0\ns_min_i32 s10, s10, {o['nlev']-1}\ns_mul_i32 s10, s10, {o['linc']//4}\ns_add_u32 s8, s10, {o['lagLo']//4}")
    a("s_sub_u32 s10, s4, s8\ns_max_i32 s7, s7, s10\nv_mov_b32 v2, s7")
    for i, lg in enumerate(lags):
        a(f"s_waitcnt vmcnt({lg})")
        if i + 1 < len(lags): a(f"s_cmp_ge_u32 s8, {lg//4}\ns_cbranch_scc1 L_ld_paced")
    a(f"""
    L_ld_paced:
    ds_write_b32 v1, v2 offset:{F_PROG}
    s_cmp_lt_u32 s4, s47
    s_cbranch_scc1 L_ld_loop
    s_mov_b64 exec, -1
    s_cmp_eq_u32 s5, 1
    s_cbranch_scc1 L_ld_v
    s_cmp_gt_u32 s5, 1
    s_cbranch_scc1 L_ld_last
    L_ld_k:
    """)
    zero_stamps(); stamp(11)
    ROT = {0: "s_mov_b32 s13, 0",
           1: "s_lshl_b32 s13, s43, 13",
           2: "s_and_b32 s13, s41, 15\ns_lshl_b32 s13, s13, 12",
           3: "s_mul_i32 s13, s2, 5\ns_and_b32 s13, s13, 15\ns_lshl_b32 s13, s13, 12",
           4: "s_lshl_b32 s13, s43, 1\ns_add_u32 s13, s13, s40\ns_and_b32 s13, s13, 15\ns_lshl_b32 s13, s13, 12",
           5: "s_add_u32 s13, s41, s40\ns_and_b32 s13, s13, 15\ns_lshl_b32 s13, s13, 12",
           6: "s_lshl_b32 s13, s40, 13",
           7: "s_lshl_b32 s13, s43, 1\ns_lshr_b32 s6, s42, 1\ns_add_u32 s13, s13, s6\ns_lshl_b32 s13, s13, 12"}[o["rot"]]
    a(f"""
    s_mov_b32 s5, 1
    s_mov_b32 s57, s59
    s_mov_b32 s52, s18
    s_mov_b32 s53, s19
    s_mov_b32 s54, 0x4000000
    v_lshl_add_u32 v12, v11, 9, v9
    s_lshl_b32 s63, s42, 3
    s_add_u32 s63, s63, s40
    s_lshl_b32 s63, s63, 21
    s_lshl_b32 s46, s43, 16
    s_add_u32 s63, s63, s46
    s_add_u32 s63, s63, {3072*512}
    {ROT}
    s_mov_b32 s46, s13
    s_mov_b32 s44, 0xffff
    s_movk_i32 s6, 128
    s_movk_i32 s45, 4096
    s_movk_i32 s9, 1024
    s_add_u32 s47, s64, 16
    s_cmp_lg_u32 s64, 0
    s_cselect_b32 s8, {o['lagKb']//4}, {o['lagKs']//4}
    s_cmp_eq_u32 s60, {T_WO}
    s_cselect_b32 s8, {o['lagKw']//4}, s8
    s_mov_b32 m0, {L_A}
    s_branch L_ld_go
    L_ld_v:
    """)
    stamp(12)
    a(f"""
    s_mov_b32 s5, 2
    s_mov_b32 s52, s20
    s_mov_b32 s53, s21
    s_mov_b32 s46, s13
    s_add_u32 s47, s64, 32
    s_cmp_lg_u32 s64, 0
    s_cselect_b32 s8, {o['lagVb']//4}, {o['lagVs']//4}
    s_cselect_b32 s6, 7, 0
    s_cmp_eq_u32 s60, {T_P}
    s_cselect_b32 s6, 4, s6
    s_cmp_eq_u32 s60, {T_WO}
    s_cselect_b32 s8, {o['lagVw']//4}, s8
    """)
    lds_wait(F_TC, "s6")
    a(f"s_mov_b32 m0, {L_B}\ns_branch L_ld_loop\nL_ld_last:")
    if late:
        a(f"""
        s_cmp_eq_u32 s5, 2
        s_cselect_b32 s6, {T_WO}, -1
        s_cmp_eq_u32 s60, s6
        s_cbranch_scc0 L_drain
        s_mov_b32 s5, 3
        s_mov_b32 s57, -30000
        s_mov_b32 s63, 0
        s_mov_b32 s44, -1
        s_mul_i32 s46, s61, {64*896}
        s_add_u32 s46, s46, {32*896}
        s_mov_b32 s8, {o['lagL']//4}
        s_add_u32 s47, s4, 8
        """)
        lds_wait(F_KC, 8)
        a(f"s_mov_b32 m0, {L_A}\ns_branch L_ld_o\nL_drain:")
    stamp(14)
    for k in range(lags[0] // 4 - 1, -1, -1):
        a(f"s_sub_u32 s6, s4, {k}\ns_max_i32 s6, s6, s7\nv_mov_b32 v2, s6\ns_waitcnt vmcnt({4*k})\nds_write_b32 v1, v2 offset:{F_PROG}")
    stamp(15)
    if stamps: a(f"s_cmp_eq_u32 s60, {T_WO}\ns_cbranch_scc1 L_exit")
    flush_stamps()
    a("s_endpgm")
    a(f"""
    L_notloader:
    v_and_b32 v6, 15, v0          ; n
    v_bfe_u32 v7, v0, 2, 2        ; r
    v_and_b32 v8, 3, v0           ; cc
    s_sub_u32 s3, s3, 2
    s_waitcnt lgkmcnt(0)
    s_load_dword s14, s[38:39], {EPOCH}
    """)
    zero_stamps()
    srd(48, 38, WS_REC)
    a("s_cmp_eq_u32 s3, -1\ns_cbranch_scc1 L_helper")

    a.c("======== attention waves 0..7")
    if stamps:
        a("s_mov_b64 s[72:73], s[70:71]"); used.append(0)
    KR = 16; QR = 48; WB = 104
    get_tag()
    a(f"""
    v_lshl_add_u32 v9, v5, 2, v7
    v_bfe_u32 v10, v9, 1, 2               ; f = (row>>1)&3
    v_mov_b32 v102, 0
    s_cmp_eq_u32 s60, {T_P}
    s_cbranch_scc1 L_pjob
    s_cmp_eq_u32 s60, {T_NONE}
    s_cbranch_scc1 L_k
    v_mul_u32_u24 v100, {OS}, v9
    v_lshl_add_u32 v100, v8, 3, v100
    s_lshl_b32 s46, s3, 7
    v_add_u32 v100, s46, v100
    v_add_u32 v11, {L_B}, v100
    v_mul_u32_u24 v101, {ALS}, v7
    v_lshl_add_u32 v101, v5, 4, v101
    v_add_u32 v101, {L_AL}, v101
    v_mul_u32_u24 v102, 28, v5
    v_add_u32 v102, v102, v7
    v_lshlrev_b32 v102, 12, v102
    v_lshl_add_u32 v102, v8, 4, v102
    v_mov_b32 v103, s{S_TAG}
    s_lshl_b32 s46, s3, 14
    s_lshl_b32 s47, s61, 6
    s_add_u32 s59, s46, s47
    s_cmp_eq_u32 s60, {T_DN}
    s_cselect_b32 s46, {YBUF-FBUF}, 0
    s_add_u32 s59, s59, s46
    s_add_u32 s59, s59, {FBUF}
    s_mov_b32 s4, 0x07060500
    s_mov_b32 s5, 0x07060501
    s_mov_b32 s6, 0x07060502
    s_mov_b32 s7, 0x07060503
    s_cmp_eq_u32 s3, 7
    s_cbranch_scc1 L_k
    """)
    def wread(vaddr, ks, base):
        for jt in range(4):
            for half in range(2):
                a(f"ds_read_b64_tr_b16 {vr(WB+16*ks+4*jt+2*half,2)}, v{vaddr} offset:{base+half*16*OS+jt*32}")
    a.c("---- early part of the out tile: operands to registers")
    lds_wait(F_PROG, 8, sleep=1)
    wread(11, 0, 0)
    if late: a(f"s_cmp_eq_u32 s60, {T_WO}\ns_cbranch_scc1 L_tc")
    lds_wait(F_PROG, 16, sleep=1)
    wread(11, 1, 32 * OS)
    a("L_tc:\ns_waitcnt lgkmcnt(0)")
    sig_add(F_TC)
    a("s_branch L_k\nL_pjob:\ns_cmp_lt_u32 s3, 4\ns_cbranch_scc0 L_k")
    a.c("---- projection job: xn[4x448] x W[448x16] per wave")
    AR = 48; BR = 104
    a(f"""
    v_mul_u32_u24 v11, {XNS}, v7
    v_lshl_add_u32 v11, v5, 4, v11
    v_add_u32 v11, {L_XN}, v11
    v_lshlrev_b32 v12, 7, v9
    v_xor_b32 v13, s3, v10
    v_lshl_add_u32 v12, v13, 5, v12
    v_lshl_add_u32 v12, v8, 3, v12
    v_add_u32 v12, {L_B}, v12
    v_mul_u32_u24 v13, {RB_B}, v5
    v_lshrrev_b32 v14, 1, v6
    v_lshl_add_u32 v13, v14, 3, v13
    s_lshl_b32 s45, s61, 8
    s_lshl_b32 s46, s3, 6
    s_add_u32 s45, s45, s46
    s_add_u32 s46, s45, {RNEAR}
    s_add_u32 s45, s45, {RBUF}
    v_mov_b32 v15, s{S_TAG}
    """)
    lds_wait(F_XN, 1, sleep=1)
    for t in range(14):
        a(f"ds_read_b128 {vr(AR+4*t,4)}, v11 offset:{t*64}")
    for t0 in (0, 7):
        lds_wait(F_PROG, 7 if t0 == 0 else 14)
        if t0:
            stamp(2)
            a(f"ds_read_b32 v3, v1 offset:{F_FAST}")
        for t in range(7):
            a(f"ds_read_b64_tr_b16 {vr(BR+4*t,2)}, v12 offset:{(t0+t)*4096}")
            a(f"ds_read_b64_tr_b16 {vr(BR+4*t+2,2)}, v12 offset:{(t0+t)*4096+2048}")
        for t in range(7):
            a(f"s_waitcnt lgkmcnt({2*(6-t)})")
            a(f"v_mfma_f32_16x16x32_bf16 v[132:135], {vr(AR+4*(t0+t),4)}, {vr(BR+4*t,4)}, {'0' if t0+t==0 else 'v[132:135]'}")
    a(f"""
    v_mov_b32_dpp v14, v132 quad_perm:[1,0,3,2] {DPP}
    v_cvt_pk_bf16_f32 v14, v132, v14
    s_mov_b32 exec_lo, 0x55555555
    s_mov_b32 exec_hi, 0x55555555
    buffer_store_dwordx2 v[14:15], v13, s[48:51], s46 offen
    """)
    a("v_cmp_ne_u32 vcc, 0, v3\ns_cbranch_vccnz L_nofar")
    a("buffer_store_dwordx2 v[14:15], v13, s[48:51], s45 offen sc1\nL_nofar:")
    sig_add(F_TC)
    stamp(3)
    a("L_k:")
    a.c("---- K fragments, scores")
    a(f"""
    v_and_b32 v11, 6, v6
    v_xor_b32 v11, v11, v5
    v_lshlrev_b32 v11, 4, v11
    v_and_b32 v12, 7, v6
    v_lshl_add_u32 v11, v12, 7, v11
    v_lshrrev_b32 v12, 3, v6
    v_lshl_add_u32 v11, v12, 12, v11
    s_lshl_b32 s46, s3, 13
    v_add_u32 v11, s46, v11
    v_xor_b32 v12, 64, v11
    s_lshl_b32 s46, s3, 1
    s_add_u32 s46, s46, s64
    s_add_u32 s46, s46, 2
    """)
    lds_wait(F_PROG, "s46", sleep=1)
    for t in range(8):
        a(f"ds_read_b128 {vr(KR+4*t,4)}, v{11+(t&1)} offset:{(t>>1)*1024}")
    a(f"""
    v_and_b32 v11, 1, v0
    v_lshlrev_b32 v12, 8, v11
    v_lshl_add_u32 v12, v5, 3, v12
    s_lshl_b32 s46, s3, 5
    s_add_u32 s46, s46, {L_SL}
    v_add_u32 v12, s46, v12
    v_mul_u32_u24 v11, {QLS}, v11
    v_lshl_add_u32 v11, v5, 4, v11
    v_add_u32 v11, {L_QL}, v11
    v_lshlrev_b32 v13, 3, v0
    v_add_u32 v13, {L_SL}, v13
    v_lshrrev_b32 v14, 5, v0
    v_mul_u32_u24 v15, {PLS}, v14
    v_bfe_u32 v3, v0, 3, 2
    v_lshl_add_u32 v15, v3, 6, v15
    v_lshl_add_u32 v15, v8, 4, v15
    v_and_b32 v3, 4, v0
    v_lshl_add_u32 v15, v3, 1, v15
    v_add_u32 v15, {L_PL}, v15
    s_mov_b32 s57, {f2u(LOG2E/16)}
    s_waitcnt lgkmcnt(0)
    """)
    if late: sig_add(F_KC)
    stamp(1)
    a(f"""
    v_lshrrev_b32 v136, 3, v6
    v_mul_u32_u24 v136, {PLS}, v136
    v_lshl_add_u32 v136, v5, 4, v136
    v_add_u32 v136, {L_PL}, v136
    v_lshrrev_b32 v137, 3, v9
    v_lshlrev_b32 v137, 12, v137
    v_and_b32 v138, 7, v9
    v_lshl_add_u32 v137, v138, 7, v137
    v_lshl_add_u32 v137, v8, 3, v137
    s_lshr_b32 s46, s3, 1
    s_lshl_b32 s46, s46, 10
    s_add_u32 s46, s46, {L_B}
    v_add_u32 v137, s46, v137
    s_and_b32 s46, s3, 1
    s_lshl_b32 s46, s46, 1
    v_xor_b32 v138, s46, v10
    v_xor_b32 v139, 1, v138
    v_lshl_add_u32 v138, v138, 5, v137
    v_lshl_add_u32 v139, v139, 5, v137
    v_lshrrev_b32 v140, 1, v5
    v_lshlrev_b32 v140, 16, v140
    v_lshl_add_u32 v140, v6, 4, v140
    s_lshl_b32 s46, s40, 3
    s_lshr_b32 s47, s3, 1
    s_add_u32 s46, s46, s47
    s_lshl_b32 s46, s46, 14
    s_lshl_b32 s47, s41, 9
    s_add_u32 s46, s46, s47
    s_and_b32 s47, s3, 1
    s_lshl_b32 s47, s47, 8
    s_add_u32 s46, s46, s47
    s_add_u32 s58, s46, {OBUF}
    """)
    a(f"""
    v_mov_b32 v89, s{S_TAG}
    v_mov_b32 v91, s{S_TAG}
    v_lshlrev_b32 v141, 9, v5
    v_lshl_add_u32 v141, v6, 4, v141
    s_lshl_b32 s45, s61, 14
    s_lshr_b32 s46, s3, 1
    s_lshl_b32 s47, s46, 12
    s_add_u32 s45, s45, s47
    s_and_b32 s47, s3, 1
    s_lshl_b32 s47, s47, 8
    s_add_u32 s45, s45, s47
    s_add_u32 s66, s45, {OBUF}
    s_lshr_b32 s45, s61, 2
    s_lshl_b32 s45, s45, 9
    s_lshl_b32 s47, s46, 7
    s_add_u32 s45, s45, s47
    s_add_u32 s67, s45, {STB}
    v_lshlrev_b32 v142, 4, v5
    s_mul_i32 s46, s46, {ALS}
    s_and_b32 s47, s3, 1
    s_lshl_b32 s47, s47, 6
    s_add_u32 s46, s46, s47
    s_add_u32 s46, s46, {L_AL}
    v_lshlrev_b32 v143, 4, v7
    v_lshl_add_u32 v143, v8, 1, v143
    v_lshrrev_b32 v144, 5, v0
    v_lshl_add_u32 v143, v144, 3, v143
    v_add_u32 v143, s46, v143
    s_add_u32 s56, s64, 20
    """)
    lds_wait(F_Q, 1, sleep=1)
    stamp(4)
    for t in range(8):
        a(f"ds_read_b128 {vr(QR+4*t,4)}, v11 offset:{t*64}")
    a(f"ds_read_b32 v3, v1 offset:{F_FAST}")
    for t in range(8):
        a(f"s_waitcnt lgkmcnt({8-t})")
        a(f"v_mfma_f32_16x16x32_bf16 v[80:83], {vr(KR+4*t,4)}, {vr(QR+4*t,4)}, {'0' if t==0 else 'v[80:83]'}")
    a(f"""
    v_cvt_pk_bf16_f32 v84, v80, v81
    v_cvt_pk_bf16_f32 v85, v82, v83
    s_mov_b32 exec_lo, 0x00030003
    s_mov_b32 exec_hi, 0x00030003
    ds_write_b64 v12, v[84:85]
    s_waitcnt lgkmcnt(0)
    v_readfirstlane_b32 s65, v3
    """)
    sig_add(F_S)
    stamp(5)
    lds_wait(F_S, 8)
    a(f"""
    ds_read_b64 v[86:87], v13
    s_waitcnt lgkmcnt(0)
    v_lshlrev_b32 v92, 16, v86
    v_and_b32 v93, 0xffff0000, v86
    v_lshlrev_b32 v94, 16, v87
    v_and_b32 v95, 0xffff0000, v87
    v_max_f32 v96, v92, v93
    v_max3_f32 v96, v96, v94, v95
    """)
    red("v_max_f32", [96], ROR(8, 4, 2, 1) + ["x16"], [97])
    for i in range(4): a(f"v_sub_f32 v{92+i}, v{92+i}, v96")
    for i in range(4): a(f"v_mul_f32 v{92+i}, s57, v{92+i}")
    for i in range(4): a(f"v_exp_f32 v{92+i}, v{92+i}")
    a(f"""
    v_add_f32 v98, v92, v93
    v_add_f32 v99, v94, v95
    v_cvt_pk_bf16_f32 v92, v92, v93
    v_cvt_pk_bf16_f32 v93, v94, v95
    v_add_f32 v98, v98, v99
    ds_write_b64 v15, v[92:93]
    s_cmp_lg_u32 s3, 0
    s_cbranch_scc1 L_nostat
    """)
    red("v_add_f32", [98], ROR(8, 4, 2, 1) + ["x16"], [97])
    a(f"""
    v_mov_b32 v97, s{S_TAG}
    v_mov_b32 v99, s{S_TAG}
    v_lshlrev_b32 v14, 9, v14
    s_lshl_b32 s46, s40, 10
    s_lshl_b32 s47, s41, 4
    s_add_u32 s46, s46, s47
    s_add_u32 s46, s46, {STB}
    s_mov_b32 exec_lo, 1
    s_mov_b32 exec_hi, 1
    """)
    store_near("buffer_store_dwordx4 v[96:99], v14, s[48:51], s46 offen")
    a("s_mov_b64 exec, -1\nL_nostat:\ns_waitcnt lgkmcnt(0)")
    PR = 16
    for t in range(4):
        a(f"ds_read_b128 {vr(PR+4*t,4)}, v136 offset:{t*64}")
    stamp(6)
    a(f"s_cmp_eq_u32 s60, {T_DN}\ns_cbranch_scc1 L_ojob\nL_q:")
    STL = ["buffer_load_dwordx4 v[48:51], v142, s[48:51], s67 offen sc1", "buffer_load_dwordx4 v[52:55], v142, s[48:51], s67 offen offset:64 sc1"]
    for t in range(4):
        if t == 0 and not o["nopoll"] and o["warm"] == 1:
            a.c("touch the hand-off lines once so that the later polls hit this XCD's L2")
            a(f"s_cmp_eq_u32 s60, {T_WO}\ns_cbranch_scc0 L_nowarm\nbuffer_load_dword v58, v141, s[48:51], s66 offen sc1\nbuffer_load_dword v59, v141, s[48:51], s66 offen offset:2048 sc1\nL_nowarm:")
        if t == 3 and not o["nopoll"]:
            a(f"s_cmp_eq_u32 s60, {T_WO}\ns_cbranch_scc0 L_nostl\n" + "\n".join(STL) + "\nL_nostl:")
        if t == 3 and o["hint"]:
            a.c("wave 7 marks this workgroup as (nearly) loaded: an early notice for the final reducers")
            a(f"s_cmp_eq_u32 s3, 7\ns_cbranch_scc0 L_nomark\ns_sub_u32 s46, s56, {o['lead']}\ns_lshl_b32 s47, s40, 7\ns_add_u32 s47, s47, {AG}\ns_lshl_b32 s45, s41, 2\nv_mov_b32 v60, s45")
            if o["lead"] >= 0:
                lds_wait(F_PROG, "s46")
                a("s_mov_b64 exec, 1")
                store_near("buffer_store_dword v89, v60, s[48:51], s47 offen")
            a("s_mov_b64 exec, -1\nL_nomark:")
        lds_wait(F_PROG, "s56", sleep=1 if t < 3 else 0)
        a(f"""
        ds_read_b64_tr_b16 v[92:93], v138 offset:{t*16384}
        ds_read_b64_tr_b16 v[94:95], v138 offset:{t*16384+8192}
        ds_read_b64_tr_b16 v[96:97], v139 offset:{t*16384}
        ds_read_b64_tr_b16 v[98:99], v139 offset:{t*16384+8192}
        """)
        if t < 3: a("s_add_u32 s56, s56, 4")
        else: a("s_mov_b32 exec_lo, 0xffff\ns_mov_b32 exec_hi, 0xffff" if False else "s_mov_b32 s56, 0")
        a(f"""
        s_waitcnt lgkmcnt(2)
        v_mfma_f32_16x16x32_bf16 v[80:83], {vr(PR+4*t,4)}, v[92:95], {'0' if t==0 else 'v[80:83]'}
        s_waitcnt lgkmcnt(0)
        v_mfma_f32_16x16x32_bf16 v[84:87], {vr(PR+4*t,4)}, v[96:99], {'0' if t==0 else 'v[84:87]'}
        """)
    a("s_mov_b32 exec_lo, 0xffff\ns_mov_b32 exec_hi, 0xffff\nv_mov_b32 v88, v80\nv_mov_b32 v90, v84")
    store_near("buffer_store_dwordx4 v[88:91], v140, s[48:51], s58 offen")
    if o["hint"] and o["lead"] < 0:
        a("s_cmp_eq_u32 s3, 7\ns_cbranch_scc0 L_nomark2\ns_mov_b64 exec, 1")
        store_near("buffer_store_dword v89, v60, s[48:51], s47 offen")
        a("L_nomark2:")
    a("s_mov_b64 exec, -1")
    stamp(7)
    a(f"s_cmp_eq_u32 s60, {T_WO}\ns_cbranch_scc0 L_adone")
    a.c("---- combine the 8 key chunks for this wo tile (loader and helper end by then: s_barrier joins the 8 waves)")
    def BL(r): return f"buffer_load_dwordx4 v[{r}:{r+3}], v141, s[48:51], s66 offen sc1\nbuffer_load_dwordx4 v[{r+4}:{r+7}], v141, s[48:51], s66 offen offset:2048 sc1"
    if not o["nopoll"]:
        a(BL(92) + "\ns_waitcnt vmcnt(3)")
        chk([49, 51, 53, 55])
        a("s_cbranch_scc1 L_stretry\nL_stok:")
    a("v_max_f32 v56, v48, v52")
    red("v_max_f32", [56], ["x16", "x32"], [57])
    a(f"""
    v_sub_f32 v14, v48, v56
    v_sub_f32 v15, v52, v56
    v_mul_f32 v14, s57, v14
    v_mul_f32 v15, s57, v15
    v_exp_f32 v14, v14
    v_exp_f32 v15, v15
    s_mov_b32 s13, 0x2000
    v_mul_f32 v56, v14, v50
    v_fmac_f32 v56, v15, v54
    """)
    red("v_add_f32", [56], ["x16", "x32"], [57])
    a("v_rcp_f32 v56, v56\nv_mul_f32 v14, v14, v56\nv_mul_f32 v15, v15, v56")
    if not o["nopoll"]:
        a("L_bchk:\ns_waitcnt vmcnt(0)")
        chk([93, 95, 97, 99])
        a("s_cbranch_scc0 L_bok\n" + ("s_mov_b64 exec, vcc\n" if o["maskb"] else "") + BL(92))
        if late:
            a.c("late half of the tile already in LDS? then fetch its operands while the poll is in flight")
            a(f"s_cmp_lg_u32 s56, 0\ns_cbranch_scc1 L_bnext\nds_read_b32 v2, v1 offset:{F_PROG}\ns_waitcnt lgkmcnt(0)\nv_cmp_le_i32 vcc, {KB_WO+40}, v2\ns_cbranch_vccz L_bnext\ns_mov_b32 s56, 1")
            wread(100, 1, 0)
            a("L_bnext:")
        a("s_sub_u32 s13, s13, 1\ns_cbranch_scc0 L_bchk\nL_bok:\ns_mov_b64 exec, -1")
    stamp(8)
    a(f"""
    v_mul_f32 v92, v92, v14
    v_mul_f32 v94, v94, v14
    v_fmac_f32 v92, v96, v15
    v_fmac_f32 v94, v98, v15
    v_permlane32_swap_b32 v92, v94
    v_add_f32 v92, v92, v94
    """)
    red("v_add_f32", [92], ["x16"], [93])
    a("v_cvt_pk_bf16_f32 v92, v92, v92\nds_write_b16 v143, v92")
    if late:
        a("s_cmp_lg_u32 s56, 0\ns_cbranch_scc1 L_lateok")
        lds_wait(F_PROG, KB_WO + 40)
        wread(100, 1, 0)
        a("L_lateok:")
    a(f"""
    s_waitcnt lgkmcnt(0)
    s_barrier
    s_cmp_eq_u32 s3, 7
    s_cbranch_scc1 L_adone
    L_ojob2:
    """)
    a.c("---- out job: a[4x64] x W[64x448], 64 columns per wave")
    stamp(9)
    a("ds_read_b128 v[92:95], v101\nds_read_b128 v[96:99], v101 offset:64\ns_waitcnt lgkmcnt(1)")
    for jt in range(4):
        a(f"v_mfma_f32_16x16x32_bf16 {vr(48+4*jt,4)}, v[92:95], {vr(WB+4*jt,4)}, 0")
    a("s_waitcnt lgkmcnt(0)")
    for jt in range(4):
        a(f"v_mfma_f32_16x16x32_bf16 {vr(48+4*jt,4)}, v[96:99], {vr(WB+16+4*jt,4)}, {vr(48+4*jt,4)}")
    for jt in range(4):
        a(f"v_perm_b32 v{64+jt}, v{48+4*jt}, v103, s{4+jt}")
    a("buffer_store_dwordx4 v[64:67], v102, s[48:51], s59 offen sc1")
    stamp(10)
    a(f"s_cmp_eq_u32 s60, {T_DN}\ns_cbranch_scc1 L_q\nL_adone:")
    if stamps:
        i8 = 72 + 2 * used.index(8); i7 = 72 + 2 * used.index(7)
        a(f"s_waitcnt lgkmcnt(0)\ns_add_u32 s10, s38, {STAMP_OFF}\ns_addc_u32 s11, s39, 0\ns_mul_i32 s12, s2, {NST*8}\ns_lshl_b32 s13, s3, 3\ns_add_u32 s12, s12, s13\nv_mov_b32 v1, s12\ns_mov_b64 exec, 1")
        a(f"v_mov_b32 v2, s{i8}\nv_mov_b32 v3, s{i8+1}\nglobal_store_dwordx2 v1, v[2:3], s[10:11] offset:{8*28}\ns_nop 1")
        a(f"v_mov_b32 v2, s{i7}\nv_mov_b32 v3, s{i7+1}\nglobal_store_dwordx2 v1, v[2:3], s[10:11] offset:{8*36}\ns_nop 1")
        a("s_cmp_lg_u32 s3, 0\ns_cbranch_scc1 L_exit")
        flush_stamps()
    a("s_endpgm")
    a("L_ojob:\ns_cmp_eq_u32 s3, 7\ns_cbranch_scc1 L_q")
    lds_wait(F_A, 8, sleep=1)
    a("s_branch L_ojob2")
    if not o["nopoll"]:
        a("L_stretry:")
        poll(STL, [49, 51, 53, 55])
        a("s_branch L_stok")

    a.c("======== helper wave (wave 1): layernorm, hand-off gathers, final reduction")
    a("L_helper:\ns_setprio 3")
    srd(52, 16, 3584)
    a(f"""
    s_getreg_b32 s65, hwreg(HW_REG_XCC_ID, 0, 4)
    s_cmp_eq_u32 s60, {T_P}
    s_cbranch_scc0 L_noln0
    v_mul_u32_u24 v9, 896, v5
    v_lshl_add_u32 v9, v6, 3, v9
    """)
    XR = 16; U = 32
    for u in range(7):
        a(f"buffer_load_dwordx2 {vr(XR+2*u,2)}, v9, s[52:55], 0 offen offset:{u*128}")
    a(f"""
    v_mul_u32_u24 v9, {XNS}, v5
    v_lshrrev_b32 v10, 3, v6
    v_lshl_add_u32 v9, v10, 6, v9
    v_lshl_add_u32 v9, v8, 4, v9
    v_and_b32 v10, 4, v6
    v_lshl_add_u32 v9, v10, 1, v9
    v_add_u32 v9, {L_XN}, v9
    L_noln0:
    """)
    get_tag()
    a.c("plain store: shows up (through L2) only for workgroups on the same XCD")
    a(f"""
    s_lshl_b32 s58, s40, 7
    s_add_u32 s58, s58, {XB}
    s_add_u32 s8, s65, s{S_TAG}
    s_mov_b32 s9, s8
    v_mov_b32 v66, s8
    s_lshl_b32 s45, s41, 2
    v_mov_b32 v68, s45
    s_mov_b64 exec, 1
    buffer_store_dword v66, v68, s[48:51], s58 offen
    s_mov_b64 exec, -1
    """)
    a(f"""
    s_cmp_eq_u32 s60, {T_P}
    s_cbranch_scc0 L_noln
    s_waitcnt vmcnt(1)
    """)
    for u in range(14):
        a(f"v_lshlrev_b32 v{U+2*u}, 16, v{XR+u}\nv_and_b32 v{U+2*u+1}, 0xffff0000, v{XR+u}")
    a(f"v_pk_add_f32 v[60:61], v[{U}:{U+1}], v[{U+2}:{U+3}]")
    for u in range(2, 14):
        a(f"v_pk_add_f32 v[60:61], v[60:61], v[{U+2*u}:{U+2*u+1}]")
    a("v_add_f32 v60, v60, v61")
    red("v_add_f32", [60], ROR(8, 4, 2, 1))
    a(f"v_mul_f32 v60, {f2u(1/448)}, v60\nv_mov_b32 v61, v60")
    for u in range(14):
        a(f"v_pk_add_f32 v[64:65], v[{U+2*u}:{U+2*u+1}], v[60:61] neg_lo:[0,1] neg_hi:[0,1]")
        a("v_pk_mul_f32 v[62:63], v[64:65], v[64:65]" if u == 0 else "v_pk_fma_f32 v[62:63], v[64:65], v[64:65], v[62:63]")
    a("v_add_f32 v62, v62, v63")
    red("v_add_f32", [62], ROR(8, 4, 2, 1))
    a(f"v_mul_f32 v62, {f2u(1/448)}, v62")
    round_bf16(62, 62)
    a(f"v_add_f32 v62, {f2u(1e-5)}, v62")
    round_bf16(62, 62)
    a("v_sqrt_f32 v62, v62")
    round_bf16(62, 62)
    a("v_rcp_f32 v62, v62")
    round_bf16(60, 60)
    a("v_mov_b32 v61, v60\nv_mov_b32 v63, v62")
    for u in range(14):
        a(f"v_pk_add_f32 v[64:65], v[{U+2*u}:{U+2*u+1}], v[60:61] neg_lo:[0,1] neg_hi:[0,1]")
        a(f"v_cvt_pk_bf16_f32 v64, v64, v65\nv_and_b32 v65, 0xffff0000, v64\nv_lshlrev_b32 v64, 16, v64")
        a(f"v_pk_mul_f32 v[64:65], v[64:65], v[62:63]\nv_cvt_pk_bf16_f32 v{XR+u}, v64, v65")
    for u in range(7):
        a(f"ds_write_b64 v9, {vr(XR+2*u,2)} offset:{u*128}")
    a("s_waitcnt lgkmcnt(0)")
    sig_set(F_XN, 1)
    a("L_noln:")
    stamp(16)
    def xb_check():
        a.c("all 32 workgroups of this kv head on this XCD? then hand-offs inside the group can stay in L2")
        a(f"s_add_u32 s4, s38, s58\ns_addc_u32 s5, s39, 0\ns_mov_b32 s10, 0\ns_load_dwordx16 s[16:31], s[4:5], 0\ns_load_dwordx16 s[84:99], s[4:5], 64\ns_waitcnt lgkmcnt(0)")
        for b in (16, 84):
            for i in range(8): a(f"s_cmp_eq_u64 s[{b+2*i}:{b+1+2*i}], s[8:9]\ns_cbranch_scc0 L_mixed")
        a(f"s_mov_b32 s10, {o['fast']}\nL_mixed:")
        sig_set(F_FAST, "s10")
    def tb_look(rep):
        a(f"s_add_u32 s4, s38, {TB + rep * 1024}\ns_addc_u32 s5, s39, 0")
        for i in range(8): a(f"s_load_dwordx2 s[{16+2*i}:{17+2*i}], s[4:5], {128*i}")
        a("s_waitcnt lgkmcnt(0)")
        for i in range(8):
            a(f"s_sub_u32 s7, s{16+2*i}, s70\ns_cmp_eq_u32 s{17+2*i}, s{S_TAG}\ns_cselect_b32 s7, s7, 0\ns_min_i32 s6, s6, s7")
        a("s_max_i32 s6, s6, -300\ns_add_u32 s7, s6, s70")
        sig_set(F_T0, "s7")
    if not o["sched"]:
        lds_wait(F_PROG, o["tb2at"], sleep=2)
        xb_check()
    if o["sched"]:
        a.c("earliest start among the XCDs: one workgroup per id class publishes, everybody takes the minimum of what is there")
        a(f"""
        s_mov_b32 s6, 0
        s_cmp_eq_u32 s60, {T_P}
        s_cbranch_scc1 L_tb2
        s_cmp_eq_u32 s41, 8
        s_cbranch_scc0 L_notb
        v_mov_b32 v16, s70
        v_mov_b32 v17, s{S_TAG}
        v_lshlrev_b32 v18, 10, v0
        s_lshl_b32 s45, s40, 7
        s_add_u32 s45, s45, {TB}
        s_mov_b64 exec, 3
        buffer_store_dwordx2 v[16:17], v18, s[48:51], s45 offen sc1
        s_mov_b64 exec, -1
        L_notb:
        """)
        tb_look(0)
        lds_wait(F_PROG, o["tb2at"], sleep=2)
        a("L_tb2:")
        xb_check()
        tb_look(1)
        if stamps:
            k = len(used)
            a(f"s_ashr_i32 s11, s6, 31\ns_add_u32 s{72+2*k}, s70, s6\ns_addc_u32 s{73+2*k}, s71, s11"); used.append(24)
            stamp(25)
    a(f"""
    s_sub_u32 s59, s2, 128
    s_and_b32 s45, s59, 3
    s_lshr_b32 s46, s59, 2
    s_mul_i32 s47, s45, 28
    s_add_u32 s47, s47, s46
    s_lshl_b32 s66, s47, 12
    s_mul_i32 s45, s45, 896
    s_lshr_b32 s47, s46, 2
    s_lshl_b32 s47, s47, 7
    s_add_u32 s45, s45, s47
    s_and_b32 s46, s46, 3
    s_lshl_b32 s46, s46, 3
    s_add_u32 s63, s45, s46
    v_and_b32 v12, 1, v5
    v_lshlrev_b32 v12, 6, v12
    v_lshrrev_b32 v13, 1, v5
    v_lshl_add_u32 v12, v13, 5, v12
    v_lshl_add_u32 v12, v8, 1, v12
    s_mul_i32 s45, s42, {RB_B}
    s_lshl_b32 s46, s40, 11
    s_add_u32 s45, s45, s46
    s_add_u32 s45, s45, {RBUF}
    v_lshlrev_b32 v9, 4, v0
    v_lshlrev_b32 v10, 3, v0
    v_add_u32 v11, {L_QL}, v10
    s_add_u32 s47, s45, {RNEAR-RBUF}
    """)
    lds_wait(F_PROG, o["qa"], sleep=2)
    stamp(22)
    if not o["nopoll"]:
        a.c("q: a few rounds on the copy that same-XCD producers make visible through L2, then the write-through copy")
        a(f"""
        s_mov_b32 s13, {o['qrounds']}
        s_mov_b32 s12, 0x2000
        L_qpoll:
        buffer_load_dwordx4 v[16:19], v9, s[48:51], s47 offen {o['pol_n']}
        buffer_load_dwordx4 v[20:23], v9, s[48:51], s47 offen offset:1024 {o['pol_n']}
        s_sub_u32 s13, s13, 1
        s_cselect_b32 s47, s45, s47
        s_waitcnt vmcnt(0)
        """)
        chk([17, 19, 21, 23])
        a("s_cbranch_scc0 L_gotq\ns_sleep 4\ns_sub_u32 s12, s12, 1\ns_cbranch_scc0 L_qpoll")
    a("L_gotq:")
    if stamps:
        k = len(used)
        a(f"s_sub_u32 s7, {o['qrounds']}, s13\ns_mul_i32 s7, s7, 100\ns_add_u32 s{72+2*k}, s70, s7\ns_addc_u32 s{73+2*k}, s71, 0"); used.append(27)
    a(f"""
    ds_write2_b32 v11, v16, v18 offset0:0 offset1:1
    ds_write2_b32 v11, v20, v22 offset0:{QLS//4} offset1:{QLS//4+1}
    """)
    a("s_waitcnt lgkmcnt(0)")
    sig_set(F_Q, 1)
    stamp(17)
    a(f"s_cmp_eq_u32 s60, {T_DN}\ns_cbranch_scc0 L_nodn")
    a(f"""
    v_mul_u32_u24 v14, {RB_B}, v5
    v_lshl_add_u32 v14, v6, 4, v14
    s_lshl_b32 s46, s61, 8
    s_add_u32 s46, s46, {RBUF+64*256}
    s_add_u32 s47, s46, {28*256}
    v_mul_u32_u24 v15, {ALS}, v5
    v_lshrrev_b32 v30, 3, v6
    v_lshl_add_u32 v15, v30, 6, v15
    v_lshl_add_u32 v15, v8, 4, v15
    v_bfe_u32 v30, v6, 2, 1
    v_lshl_add_u32 v15, v30, 3, v15
    v_add_u32 v15, {L_AL}, v15
    """)
    lds_wait(F_PROG, o["h_at"], sleep=2)
    if not o["nopoll"]:
        a(f"""
        s_mov_b32 s13, {o['qrounds']}
        s_mov_b32 s12, 0x2000
        s_mov_b32 s7, {RNEAR-RBUF}
        L_hpoll:
        s_add_u32 s4, s46, s7
        s_add_u32 s5, s47, s7
        buffer_load_dwordx4 v[32:35], v14, s[48:51], s4 offen sc1
        buffer_load_dwordx4 v[36:39], v14, s[48:51], s5 offen sc1
        s_sub_u32 s13, s13, 1
        s_cselect_b32 s7, 0, s7
        s_waitcnt vmcnt(0)
        """)
        chk([33, 35, 37, 39])
        a("s_cbranch_scc0 L_goth\ns_sleep 4\ns_sub_u32 s12, s12, 1\ns_cbranch_scc0 L_hpoll\nL_goth:")
    for i, (gq, uq) in enumerate(((32, 36), (34, 38))):
        a(f"""
        v_lshlrev_b32 v40, 16, v{gq}
        v_and_b32 v41, 0xffff0000, v{gq}
        v_lshlrev_b32 v42, 16, v{uq}
        v_and_b32 v43, 0xffff0000, v{uq}
        v_max_f32 v40, 0, v40
        v_max_f32 v41, 0, v41
        v_mul_f32 v40, v40, v42
        v_mul_f32 v41, v41, v43
        v_cvt_pk_bf16_f32 v{28+i}, v40, v41
        """)
    a("ds_write_b64 v15, v[28:29]\ns_waitcnt lgkmcnt(0)")
    sig_set(F_A, 8)
    a("L_nodn:")
    stamp(18)
    if o["warm"] == 2 and not o["nopoll"]:
        a.c("the lightest workgroups touch their group's o hand-off lines once, so that the later polls hit this XCD's L2")
        a(f"""
        s_cmp_ge_u32 s41, 28
        s_cbranch_scc0 L_nowarm2
        s_lshl_b32 s46, s40, 17
        s_sub_u32 s47, s41, 28
        s_lshl_b32 s47, s47, 15
        s_add_u32 s46, s46, s47
        s_add_u32 s46, s46, {OBUF}
        v_lshlrev_b32 v14, 7, v0
        """)
        for i in range(4):
            a(f"buffer_load_dword v15, v14, s[48:51], s46 offen sc1\ns_add_u32 s46, s46, 8192")
        a("L_nowarm2:")
    if o["hint"] and not o["nopoll"]:
        a(f"""
        s_cmp_lt_u32 s2, 8
        s_cbranch_scc0 L_noagg
        s_lshl_b32 s46, s40, 7
        s_add_u32 s47, s46, {HC}
        s_add_u32 s46, s46, {AG}
        v_and_b32 v14, 31, v0
        v_lshlrev_b32 v14, 2, v14
        v_lshlrev_b32 v15, 10, v0
        v_mov_b32 v17, s{S_TAG}
        """)
        lds_wait(F_PROG, 14 + o["aggat"], sleep=2)
        a(f"""
        s_mov_b32 s12, 0x4000
        L_agg:
        buffer_load_dword v16, v14, s[48:51], s46 offen sc1
        s_waitcnt vmcnt(0)
        v_cmp_ne_u32 vcc, s{S_TAG}, v16
        s_cbranch_vccz L_aggok
        s_sub_u32 s12, s12, 1
        s_cbranch_scc0 L_agg
        L_aggok:
        s_mov_b64 exec, 0xff
        buffer_store_dword v17, v15, s[48:51], s47 offen sc1
        s_mov_b64 exec, -1
        L_noagg:
        """)
    a(f"""
    s_cmp_lt_u32 s59, 112
    s_cbranch_scc0 L_hdone
    buffer_load_ushort v13, v12, s[52:55], s63 offen
    s_add_u32 s46, s66, {YBUF}
    s_add_u32 s45, s66, {FBUF}
    s_mov_b32 s4, 0x0c0c0400
    s_mov_b32 s5, 0x0c040100
    s_mov_b32 s6, 0x04020100
    s_and_b32 s7, s{S_TAG}, 0xff
    v_mov_b32 v20, s7
    s_bfe_u32 s7, s{S_TAG}, 0x80008
    v_mov_b32 v21, s7
    s_bfe_u32 s7, s{S_TAG}, 0x80010
    v_mov_b32 v22, s7
    s_lshr_b32 s7, s{S_TAG}, 24
    v_mov_b32 v23, s7
    s_add_u32 s47, s64, 32
    """)
    srd(52, 34, 3584)
    lds_wait(F_PROG, "s47", sleep=2)
    poll(["buffer_load_dwordx4 v[16:19], v9, s[48:51], s46 offen sc1", "s_mov_b32 exec_hi, 0xffff",
          "buffer_load_dwordx4 v[20:23], v9, s[48:51], s46 offen offset:1024 sc1", "s_mov_b32 exec_hi, -1"], [40, 41], sleep=4,
         pre=e4_tags([16, 20], 40))
    for k in range(4): a(f"v_add_f32 v{16+k}, v{16+k}, v{20+k}")
    red4(16)
    round_bf16(16, 16)
    a(f"v_mul_f32 v20, {f2u(-LOG2E)}, v16\nv_exp_f32 v20, v20\nv_add_f32 v20, 1.0, v20\nv_rcp_f32 v20, v20\nv_mul_f32 v16, v16, v20")
    round_bf16(16, 16)
    a("v_lshlrev_b32 v13, 16, v13")
    stamp(19)
    if o["hint"] and not o["nopoll"]:
        a(f"""
        s_and_b32 s47, s65, 7
        s_lshl_b32 s47, s47, 10
        s_add_u32 s47, s47, {HC}
        v_lshlrev_b32 v14, 7, v0
        s_mov_b32 s12, 0x1000
        s_mov_b64 exec, 0xff
        L_hint:
        buffer_load_dword v15, v14, s[48:51], s47 offen sc1
        s_waitcnt vmcnt(0)
        v_cmp_ne_u32 vcc, s{S_TAG}, v15
        s_cbranch_vccz L_hintok
        s_sub_u32 s12, s12, 1
        s_cbranch_scc0 L_hint
        L_hintok:
        s_mov_b64 exec, -1
        """)
        if o["hdelay"]: a(f"s_sleep {o['hdelay']}")
        stamp(23)
    poll([f"buffer_load_dwordx4 {vr(24+4*t,4)}, v9, s[48:51], s45 offen offset:{t*1024} sc1" for t in range(4)],
         [40, 41, 42, 43], pre=e4_tags([24, 28, 32, 36], 40))
    stamp(20)
    for k in range(4): a(f"v_add_f32 v{24+k}, v{24+k}, v{28+k}\nv_add_f32 v{32+k}, v{32+k}, v{36+k}")
    for k in range(4): a(f"v_add_f32 v{24+k}, v{24+k}, v{32+k}")
    red4(24)
    round_bf16(24, 24)
    a("v_mul_f32 v24, v24, v16")
    round_bf16(24, 24)
    a(f"""
    v_add_f32 v24, v24, v13
    v_cvt_pk_bf16_f32 v24, v24, v24
    s_mov_b32 exec_lo, 0x000f000f
    s_mov_b32 exec_hi, 0x000f000f
    buffer_store_short v24, v12, s[52:55], s63 offen {'sc1' if o['outsc1'] else ''}
    s_cmp_lg_u32 s59, 0
    s_cbranch_scc1 L_hdone
    s_mov_b64 exec, 1
    v_mov_b32 v2, s{S_TAG}
    v_mov_b32 v3, 0
    buffer_store_dword v2, v3, s[48:51], 0 offen offset:{EPOCH}
    L_hdone:
    """)
    stamp(21)
    flush_stamps()
    a("L_exit:\ns_endpgm\nL_codeend:")
    body = hazard.fix(a.text())
    return kernel_file([(NAME + "_kernel", body, 152, 100, 152)], [(NAME + "_kernel", 256, 640, LDS_BYTES)])

if __name__ == "__main__":
    out = sys.argv[1]
    kw = {}
    for x in sys.argv[2:]:
        k, v = x.split("=")
        kw[k] = (v.replace("def", "").replace("+", " ") if k.startswith("pol") else int(v))
    open(out, "w").write(gen(**kw))
```

```python
import sys, struct
sys.path.insert(0, "tools")
from asmlib import *
import hazard

EPOCH = 0
RBUF = 0x1000; RB_B = 120 * 256
RNEAR = 0x40000
STB = 0x20000
TB = 0x26000
AG = 0x27000
HC = 0x28000
XB = 0x24000
OBUF = 0x100000
FBUF = 0x200000
YBUF = 0x280000
WS_REC = 0x400000
STAMP_OFF = 128 << 20
L_A = 0; L_B = 65536; OS = 928
L_XN = 131072; XNS = 912
L_QL = L_XN + 4 * XNS; QLS = 544
L_SL = L_QL + 2 * QLS
L_PL = L_SL + 512; PLS = 288
L_AL = L_PL + 2 * PLS; ALS = 144
L_FLAG = L_AL + 4 * ALS
LDS_BYTES = L_FLAG + 256
F_XN, F_Q, F_PROG, F_KC, F_TC, F_S, F_A, F_FAST, F_T0 = 0, 4, 8, 12, 16, 20, 24, 28, 32
LOG2E = 1.4426950408889634
def f2u(x): return "0x%08x" % struct.unpack("<I", struct.pack("<f", x))[0]
T_NONE, T_P, T_WO, T_DN = 0, 1, 2, 3
DEF = dict(lagQ=28, lagT=16, lagTw=16, lagKb=20, lagKw=20, lagKs=12, lagVb=28, lagVw=28, lagVs=12, lagL=40, pol_kv="nt", pol_w="nt", stamps=0, prefetch=1,
           nopoll=0, fast=1, q_wq=24, q_gu=20, q_dn=22, q_wo=19, q_no=18, outsc1=0, rsleep=16, late=0, pipeb=0, rot=4, sched=1, D=780, t1=110, tq=170, lagLo=12, lagHi=32, qa=6, qrounds=6, h_at=18, hint=1, lead=-1, aggat=26, hdelay=0, warm=2, warmat=12, maskb=1, Dwo=0, nlev=2, lstep=20, linc=8, tb2at=2, pol_n="sc1", yearly=0, yat=32, pipeb2=1, tmean=1)

def gen(**kw):
    o = dict(DEF); o.update(kw)
    stamps = o["stamps"]; NST = 44; pol_kv = o["pol_kv"]; pol_w = o["pol_w"]; late = 0
    assert pol_kv == pol_w
    a = Asm()
    S_TAG = 15
    used = []
    def stamp(k):
        if stamps:
            a(f"s_memrealtime s[{72+2*len(used)}:{73+2*len(used)}]"); used.append(k)
    def zero_stamps():
        if stamps:
            for i in range(13): a(f"s_mov_b64 s[{72+2*i}:{73+2*i}], 0")
    def flush_stamps():
        if stamps and used:
            a(f"s_waitcnt lgkmcnt(0)\ns_add_u32 s10, s38, {STAMP_OFF}\ns_addc_u32 s11, s39, 0\ns_mul_i32 s12, s2, {NST*8}\nv_mov_b32 v1, s12\ns_mov_b64 exec, 1")
            for i, k in enumerate(used):
                a(f"v_mov_b32 v2, s{72+2*i}\nv_mov_b32 v3, s{73+2*i}\nglobal_store_dwordx2 v1, v[2:3], s[10:11] offset:{8*k}\ns_nop 1")
        used.clear()
    def srd(reg, ptr, size):
        a(f"s_mov_b32 s{reg}, s{ptr}\ns_mov_b32 s{reg+1}, s{ptr+1}\ns_mov_b32 s{reg+2}, {size}\ns_mov_b32 s{reg+3}, 0x20000")
    def lds_wait(off, need, sleep=0):
        l = a.label("lw"); d = a.label("lwd")
        a(f"s_mov_b32 s12, 0x40000\n{l}:\nds_read_b32 v2, v1 offset:{off}\ns_waitcnt lgkmcnt(0)\nv_cmp_le_i32 vcc, {need}, v2\ns_cbranch_vccnz {d}")
        if sleep: a(f"s_sleep {sleep}")
        a(f"s_sub_u32 s12, s12, 1\ns_cbranch_scc0 {l}\n{d}:")
    def sig_set(off, val):
        a(f"v_mov_b32 v2, {val}\nds_write_b32 v1, v2 offset:{off}")
    def sig_add(off):
        a(f"s_mov_b64 exec, 1\nv_mov_b32 v2, 1\nds_add_u32 v1, v2 offset:{off}\ns_mov_b64 exec, -1")
    def get_tag():
        a(f"s_waitcnt lgkmcnt(0)\ns_mul_i32 s{S_TAG}, s14, 0x9E3779B1\ns_add_u32 s{S_TAG}, s{S_TAG}, 0x632BE5AB")
    def chk(regs):
        a(f"v_cmp_ne_u32 vcc, s{S_TAG}, v{regs[0]}")
        for t in regs[1:]: a(f"v_cmp_ne_u32 s[10:11], s{S_TAG}, v{t}\ns_or_b64 vcc, vcc, s[10:11]")
    def poll(loads, tagregs, sleep=0, pre=None):
        if o["nopoll"]: return
        l = a.label("pl"); d = a.label("pld")
        a(f"s_mov_b32 s12, 0x4000\n{l}:")
        for x in loads: a(x)
        a("s_waitcnt vmcnt(0)")
        if pre: a(pre)
        chk(tagregs)
        a(f"s_cbranch_scc0 {d}")
        if sleep: a(f"s_sleep {sleep}")
        a(f"s_sub_u32 s12, s12, 1\ns_cbranch_scc0 {l}\n{d}:")
    DPP = "row_mask:0xf bank_mask:0xf"
    def red(op, vs, steps, tmps=None):
        for st in steps:
            if st in ("x16", "x32"):
                sw = "v_permlane16_swap_b32" if st == "x16" else "v_permlane32_swap_b32"
                for v, t in zip(vs, tmps): a(f"v_mov_b32 v{t}, v{v}")
                for v, t in zip(vs, tmps): a(f"{sw} v{v}, v{t}")
                for v, t in zip(vs, tmps): a(f"{op} v{v}, v{v}, v{t}")
            else:
                for v in vs: a(f"{op}_dpp v{v}, v{v}, v{v} {st} {DPP}")
    ROR = lambda *k: ["row_ror:%d" % i for i in k]
    def round_bf16(dst, src):
        a(f"v_cvt_pk_bf16_f32 v{dst}, v{src}, v{src}\nv_and_b32 v{dst}, 0xffff0000, v{dst}")
    def e4_tags(bases, dst):
        s = ""
        for i, b in enumerate(bases): s += f"v_perm_b32 v{dst+i}, v{b+1}, v{b}, s4\n"
        for i, b in enumerate(bases): s += f"v_perm_b32 v{dst+i}, v{b+2}, v{dst+i}, s5\n"
        for i, b in enumerate(bases): s += f"v_perm_b32 v{dst+i}, v{b+3}, v{dst+i}, s6\n"
        return s
    def red4(b):
        a(f"""
        v_permlane32_swap_b32 v{b}, v{b+1}
        v_permlane32_swap_b32 v{b+2}, v{b+3}
        v_add_f32 v{b}, v{b}, v{b+1}
        v_add_f32 v{b+2}, v{b+2}, v{b+3}
        v_permlane16_swap_b32 v{b}, v{b+2}
        v_add_f32 v{b}, v{b}, v{b+2}
        v_add_f32_dpp v{b}, v{b}, v{b} row_ror:4 {DPP}
        v_add_f32_dpp v{b}, v{b}, v{b} row_ror:8 {DPP}
        """)
    def store_near(instr):
        l = a.label("far"); d = a.label("st")
        a(f"s_cmp_eq_u32 s65, 0\ns_cbranch_scc1 {l}\n{instr}\ns_branch {d}\n{l}:\n{instr} sc1\n{d}:")
    KB_WO = 8 if late else 16

    a(f"""
    s_cmp_ge_u32 s2, 256
    s_cbranch_scc1 L_exit
    s_load_dwordx16 s[16:31], s[0:1], 0
    s_load_dwordx8 s[32:39], s[0:1], 64
    s_memrealtime s[70:71]
    v_lshrrev_b32 v4, 6, v0
    s_lshr_b32 s6, s2, 5
    s_and_b32 s61, s2, 31
    v_readfirstlane_b32 s3, v4
    s_and_b32 s40, s2, 7          ; hkv
    s_lshr_b32 s41, s2, 3         ; j = 8*b + c
    s_lshr_b32 s42, s2, 6         ; b
    s_and_b32 s43, s41, 7         ; c
    s_lshl_b32 s7, s40, 3
    s_add_u32 s7, s7, s43
    s_cmp_lt_u32 s61, 28
    s_cselect_b32 s69, s6, 7
    s_cmp_lt_u32 s6, 4
    s_cselect_b32 s69, s6, s69    ; s69 = class
    s_cselect_b32 s61, s7, s61
    s_lshl_b32 s6, s69, 2
    s_or_b32 s6, s6, 0x40000
    s_bfe_u32 s60, 0x03112211, s6
    s_bfe_u32 s64, 0x08778877, s6
    s_lshl_b32 s64, s64, 1
    v_mov_b32 v1, {L_FLAG}
    s_cmp_eq_u32 s3, 0
    s_cbranch_scc1 L_loader
    """)
    if o["prefetch"]:
        a.c("pull this kernel's code into L2 as data (a quarter per workgroup, one 128-B line per lane of wave 1)")
        a(f"""
        s_cmp_eq_u32 s3, 1
        s_cbranch_scc0 L_nopf
        s_getpc_b64 s[4:5]
        L_pc:
        s_bfe_u32 s6, s2, 0x20003
        s_lshl_b32 s6, s6, 12
        v_and_b32 v2, 31, v0
        v_lshl_add_u32 v2, v2, 7, s6
        v_min_u32 v2, L_codeend-L_pc-4, v2
        global_load_dword v3, v2, s[4:5]
        L_nopf:
        """)
    a("s_barrier\ns_branch L_others\nL_loader:")
    a.c("======== loader wave (wave 0): units of 4 LDS-DMA loads, s8 = units kept in flight, F_PROG = units landed")
    tauq = int(round((o["D"] - o["tq"]) * 16 / 32))
    tau = lambda U, d=0: int(round((o["D"] + d - o["t1"]) * 16 / U))
    lags = [o["lagHi"], o["lagLo"]]
    ROT = {0: "s_mov_b32 s13, 0",
           1: "s_lshl_b32 s13, s43, 13",
           4: "s_lshl_b32 s13, s43, 1\ns_add_u32 s13, s13, s40\ns_and_b32 s13, s13, 15\ns_lshl_b32 s13, s13, 12"}[o["rot"]]
    KSET = f"""
    s_mov_b32 s5, 1
    s_mov_b32 s57, s59
    s_mov_b32 s54, 0x4000000
    v_lshl_add_u32 v12, v11, 9, v9
    s_lshl_b32 s63, s42, 3
    s_add_u32 s63, s63, s40
    s_lshl_b32 s63, s63, 5
    s_add_u32 s63, s63, s43
    s_add_u32 s63, s63, 24
    s_lshl_b32 s63, s63, 16
    {ROT}
    s_mov_b32 s46, s13
    s_mov_b32 s44, 0xffff
    s_movk_i32 s6, 128
    s_movk_i32 s45, 4096
    s_movk_i32 s9, 1024
    s_add_u32 s47, s64, 16
    s_mov_b32 m0, {L_A}
    """
    a(f"""
    s_bfe_u32 s7, 0x18764433, s6
    s_lshl_b32 s7, s7, 3
    s_load_dwordx2 s[52:53], s[0:1], s7
    s_setprio 2
    v_lshl_add_u32 v4, v0, 2, v1
    v_mov_b32 v2, 0
    ds_write_b32 v4, v2
    v_lshrrev_b32 v9, 3, v0
    v_and_b32 v9, 6, v9
    v_xor_b32 v9, v9, v0
    v_and_b32 v9, 7, v9
    v_lshlrev_b32 v9, 4, v9
    v_lshrrev_b32 v11, 3, v0
    s_mov_b32 s4, 0
    s_mov_b32 s5, 0                       ; phase
    s_mov_b32 s7, 0
    s_mov_b32 s47, s64
    s_mov_b32 s63, 0
    s_mov_b32 s44, -1
    s_mov_b32 s55, 0x20000
    s_mov_b32 m0, {L_B}
    s_movk_i32 s57, {o['t1']*16}
    s_mov_b32 s59, s57
    s_cmp_eq_u32 s60, {T_P}
    s_cbranch_scc0 L_ld_notp
    s_movk_i32 s56, {tau(46)}
    s_movk_i32 s45, 3584
    s_cmp_lt_u32 s69, 2
    s_cselect_b32 s45, 8192, s45
    s_cselect_b32 s57, -30000, s57
    s_cselect_b32 s59, {o['tq']*16-14*tauq}, s59
    s_cselect_b32 s56, {tauq}, s56
    s_mul_i32 s54, s45, 448
    v_mad_u32_u24 v12, s45, v11, v9
    s_lshl_b32 s6, s45, 3
    s_lshl_b32 s45, s45, 5
    s_movk_i32 s9, 1024
    s_lshl_b32 s46, s61, 7
    s_branch L_ld_first
    L_ld_notp:
    s_cmp_eq_u32 s60, {T_NONE}
    s_cbranch_scc1 L_ld_none
    s_movk_i32 s56, {tau(48)}
    s_mov_b32 s54, {1792*896}
    s_cmp_eq_u32 s60, {T_WO}
    s_cselect_b32 s54, {4096*896}, s54
    s_cselect_b32 s56, {tau(48, o['Dwo'])}, s56
    s_mul_i32 s46, s61, {64*896}
    v_lshlrev_b32 v12, 4, v0
    s_movk_i32 s6, 896
    s_movk_i32 s45, 3584
    s_movk_i32 s9, {OS}
    s_mov_b32 exec_hi, 0x00ffffff
    L_ld_first:
    s_waitcnt lgkmcnt(0)
    s_barrier
    L_ld_go:
    v_add_u32 v13, s6, v12
    v_add_u32 v14, s6, v13
    v_add_u32 v15, s6, v14
    L_ld_loop:
    s_add_u32 s62, s46, s63
    buffer_load_dwordx4 v12, s[52:55], s62 offen {pol_kv} lds
    s_add_u32 m0, m0, s9
    s_memrealtime s[10:11]
    buffer_load_dwordx4 v13, s[52:55], s62 offen {pol_kv} lds
    s_add_u32 m0, m0, s9
    ds_read_b32 v3, v1 offset:{F_T0}
    buffer_load_dwordx4 v14, s[52:55], s62 offen {pol_kv} lds
    s_add_u32 m0, m0, s9
    s_mul_i32 s58, s7, s56
    buffer_load_dwordx4 v15, s[52:55], s62 offen {pol_kv} lds
    s_add_u32 m0, m0, s9
    s_add_u32 s58, s58, s57               ; time (x16) by which the landed units were due
    s_add_u32 s4, s4, 1
    s_add_u32 s46, s46, s45
    s_and_b32 s46, s46, s44
    s_waitcnt lgkmcnt(0)
    v_readfirstlane_b32 s11, v3
    s_sub_u32 s10, s10, s70
    s_sub_u32 s10, s10, s11
    s_lshl_b32 s10, s10, 4
    s_cmp_gt_i32 s10, s58
    s_cselect_b32 s8, {o['lagHi']//4}, {o['lagLo']//4}
    s_sub_u32 s10, s4, s8
    s_max_i32 s7, s7, s10
    v_mov_b32 v2, s7
    s_waitcnt vmcnt({o['lagHi']})
    s_cmp_ge_u32 s8, {o['lagHi']//4}
    s_cbranch_scc1 L_ld_paced
    s_waitcnt vmcnt({o['lagLo']})
    L_ld_paced:
    ds_write_b32 v1, v2 offset:{F_PROG}
    s_cmp_lt_u32 s4, s47
    s_cbranch_scc1 L_ld_loop
    s_mov_b64 exec, -1
    s_cmp_eq_u32 s5, 1
    s_cbranch_scc1 L_ld_v
    s_cmp_gt_u32 s5, 1
    s_cbranch_scc1 L_drain
    """)
    zero_stamps(); stamp(11)
    a("s_mov_b32 s52, s18\ns_mov_b32 s53, s19" + KSET + "s_branch L_ld_go\nL_ld_none:")
    if stamps: zero_stamps()
    a(f"s_movk_i32 s56, {tau(32)}" + KSET + "s_branch L_ld_first\nL_ld_v:")
    stamp(12)
    a(f"""
    s_mov_b32 s5, 2
    s_mov_b32 s52, s20
    s_mov_b32 s53, s21
    s_mov_b32 s46, s13
    s_add_u32 s47, s64, 32
    s_cmp_lg_u32 s64, 0
    s_cselect_b32 s6, 7, 0
    s_cmp_eq_u32 s60, {T_P}
    s_cselect_b32 s6, 4, s6
    """)
    lds_wait(F_TC, "s6")
    a(f"s_mov_b32 m0, {L_B}\ns_branch L_ld_loop\nL_drain:")
    stamp(14)
    for k in range(lags[0] // 4 - 1, -1, -1):
        a(f"s_sub_u32 s6, s4, {k}\ns_max_i32 s6, s6, s7\nv_mov_b32 v2, s6\ns_waitcnt vmcnt({4*k})\nds_write_b32 v1, v2 offset:{F_PROG}")
    stamp(15)
    if stamps: a(f"s_cmp_eq_u32 s60, {T_WO}\ns_cbranch_scc1 L_exit")
    flush_stamps()
    a("s_endpgm")
    a("L_others:")
    a(f"""
    v_and_b32 v0, 63, v0
    v_lshrrev_b32 v5, 4, v0       ; g
    v_and_b32 v6, 15, v0          ; n
    v_bfe_u32 v7, v0, 2, 2        ; r
    v_and_b32 v8, 3, v0           ; cc
    s_sub_u32 s3, s3, 2
    s_cmp_eq_u32 s69, 4
    s_cselect_b32 s6, 64, 0
    s_cmp_eq_u32 s69, 5
    s_cselect_b32 s6, 92, s6
    s_add_u32 s61, s61, s6
    s_waitcnt lgkmcnt(0)
    s_load_dword s14, s[38:39], {EPOCH}
    """)
    zero_stamps()
    srd(48, 38, WS_REC)
    a("s_cmp_eq_u32 s3, -1\ns_cbranch_scc1 L_helper")

    a.c("======== attention waves 0..7")
    if stamps:
        a("s_mov_b64 s[72:73], s[70:71]"); used.append(0)
    KR = 16; QR = 48; WB = 104
    get_tag()
    a(f"""
    v_lshl_add_u32 v9, v5, 2, v7
    v_bfe_u32 v10, v9, 1, 2               ; f = (row>>1)&3
    v_mov_b32 v102, 0
    s_cmp_eq_u32 s60, {T_P}
    s_cbranch_scc1 L_pjob
    s_cmp_eq_u32 s60, {T_NONE}
    s_cbranch_scc1 L_k
    v_mul_u32_u24 v100, {OS}, v9
    v_lshl_add_u32 v100, v8, 3, v100
    s_lshl_b32 s46, s3, 7
    v_add_u32 v100, s46, v100
    v_add_u32 v11, {L_B}, v100
    v_mul_u32_u24 v101, {ALS}, v7
    v_lshl_add_u32 v101, v5, 4, v101
    v_add_u32 v101, {L_AL}, v101
    v_mul_u32_u24 v102, 28, v5
    v_add_u32 v102, v102, v7
    v_lshlrev_b32 v102, 12, v102
    v_lshl_add_u32 v102, v8, 4, v102
    v_mov_b32 v103, s{S_TAG}
    s_lshl_b32 s46, s3, 14
    s_lshl_b32 s47, s61, 6
    s_add_u32 s59, s46, s47
    s_cmp_eq_u32 s60, {T_DN}
    s_cselect_b32 s46, {YBUF-FBUF}, 0
    s_add_u32 s59, s59, s46
    s_add_u32 s59, s59, {FBUF}
    s_mov_b32 s4, 0x07060500
    s_mov_b32 s5, 0x07060501
    s_mov_b32 s6, 0x07060502
    s_mov_b32 s7, 0x07060503
    s_cmp_eq_u32 s3, 7
    s_cbranch_scc1 L_k
    """)
    def wread(vaddr, ks, base):
        for jt in range(4):
            for half in range(2):
                a(f"ds_read_b64_tr_b16 {vr(WB+16*ks+4*jt+2*half,2)}, v{vaddr} offset:{base+half*16*OS+jt*32}")
    a.c("---- early part of the out tile: operands to registers")
    lds_wait(F_PROG, 8, sleep=1)
    wread(11, 0, 0)
    if late: a(f"s_cmp_eq_u32 s60, {T_WO}\ns_cbranch_scc1 L_tc")
    lds_wait(F_PROG, 16, sleep=1)
    wread(11, 1, 32 * OS)
    a("L_tc:\ns_waitcnt lgkmcnt(0)")
    sig_add(F_TC)
    if o["yearly"]: a(f"s_cmp_eq_u32 s60, {T_DN}\ns_cbranch_scc1 L_ojob")
    a("s_branch L_k\nL_pjob:\ns_cmp_lt_u32 s3, 4\ns_cbranch_scc0 L_k")
    a.c("---- projection job: xn[4x448] x W[448x16] per wave")
    AR = 48; BR = 104
    a(f"""
    v_mul_u32_u24 v11, {XNS}, v7
    v_lshl_add_u32 v11, v5, 4, v11
    v_add_u32 v11, {L_XN}, v11
    v_lshlrev_b32 v12, 7, v9
    v_xor_b32 v13, s3, v10
    v_lshl_add_u32 v12, v13, 5, v12
    v_lshl_add_u32 v12, v8, 3, v12
    v_add_u32 v12, {L_B}, v12
    v_mul_u32_u24 v13, {RB_B}, v5
    v_lshrrev_b32 v14, 1, v6
    v_lshl_add_u32 v13, v14, 3, v13
    s_lshl_b32 s45, s61, 8
    s_lshl_b32 s46, s3, 6
    s_add_u32 s45, s45, s46
    s_add_u32 s46, s45, {RNEAR}
    s_add_u32 s45, s45, {RBUF}
    v_mov_b32 v15, s{S_TAG}
    """)
    lds_wait(F_XN, 1, sleep=1)
    for t in range(14):
        a(f"ds_read_b128 {vr(AR+4*t,4)}, v11 offset:{t*64}")
    for t0 in (0, 7):
        lds_wait(F_PROG, 7 if t0 == 0 else 14)
        if t0:
            stamp(2)
            a(f"ds_read_b32 v3, v1 offset:{F_FAST}")
        for t in range(7):
            a(f"ds_read_b64_tr_b16 {vr(BR+4*t,2)}, v12 offset:{(t0+t)*4096}")
            a(f"ds_read_b64_tr_b16 {vr(BR+4*t+2,2)}, v12 offset:{(t0+t)*4096+2048}")
        for t in range(7):
            a(f"s_waitcnt lgkmcnt({2*(6-t)})")
            a(f"v_mfma_f32_16x16x32_bf16 v[132:135], {vr(AR+4*(t0+t),4)}, {vr(BR+4*t,4)}, {'0' if t0+t==0 else 'v[132:135]'}")
    a(f"""
    v_mov_b32_dpp v14, v132 quad_perm:[1,0,3,2] {DPP}
    v_cvt_pk_bf16_f32 v14, v132, v14
    s_mov_b32 exec_lo, 0x55555555
    s_mov_b32 exec_hi, 0x55555555
    buffer_store_dwordx2 v[14:15], v13, s[48:51], s46 offen
    """)
    a("v_cmp_ne_u32 vcc, 0, v3\ns_cbranch_vccnz L_nofar")
    a("buffer_store_dwordx2 v[14:15], v13, s[48:51], s45 offen sc1\nL_nofar:")
    sig_add(F_TC)
    stamp(3)
    a("L_k:")
    a.c("---- K fragments, scores")
    a(f"""
    v_and_b32 v11, 6, v6
    v_xor_b32 v11, v11, v5
    v_lshlrev_b32 v11, 4, v11
    v_and_b32 v12, 7, v6
    v_lshl_add_u32 v11, v12, 7, v11
    v_lshrrev_b32 v12, 3, v6
    v_lshl_add_u32 v11, v12, 12, v11
    s_lshl_b32 s46, s3, 13
    v_add_u32 v11, s46, v11
    v_xor_b32 v12, 64, v11
    s_lshl_b32 s46, s3, 1
    s_add_u32 s46, s46, s64
    s_add_u32 s46, s46, 2
    """)
    lds_wait(F_PROG, "s46", sleep=1)
    for t in range(8):
        a(f"ds_read_b128 {vr(KR+4*t,4)}, v{11+(t&1)} offset:{(t>>1)*1024}")
    a(f"""
    v_and_b32 v11, 1, v0
    v_lshlrev_b32 v12, 8, v11
    v_lshl_add_u32 v12, v5, 3, v12
    s_lshl_b32 s46, s3, 5
    s_add_u32 s46, s46, {L_SL}
    v_add_u32 v12, s46, v12
    v_mul_u32_u24 v11, {QLS}, v11
    v_lshl_add_u32 v11, v5, 4, v11
    v_add_u32 v11, {L_QL}, v11
    v_lshlrev_b32 v13, 3, v0
    v_add_u32 v13, {L_SL}, v13
    v_lshrrev_b32 v14, 5, v0
    v_mul_u32_u24 v15, {PLS}, v14
    v_bfe_u32 v3, v0, 3, 2
    v_lshl_add_u32 v15, v3, 6, v15
    v_lshl_add_u32 v15, v8, 4, v15
    v_and_b32 v3, 4, v0
    v_lshl_add_u32 v15, v3, 1, v15
    v_add_u32 v15, {L_PL}, v15
    s_mov_b32 s57, {f2u(LOG2E/16)}
    s_waitcnt lgkmcnt(0)
    """)
    if late: sig_add(F_KC)
    stamp(1)
    a(f"""
    v_lshrrev_b32 v136, 3, v6
    v_mul_u32_u24 v136, {PLS}, v136
    v_lshl_add_u32 v136, v5, 4, v136
    v_add_u32 v136, {L_PL}, v136
    v_lshrrev_b32 v137, 3, v9
    v_lshlrev_b32 v137, 12, v137
    v_and_b32 v138, 7, v9
    v_lshl_add_u32 v137, v138, 7, v137
    v_lshl_add_u32 v137, v8, 3, v137
    s_lshr_b32 s46, s3, 1
    s_lshl_b32 s46, s46, 10
    s_add_u32 s46, s46, {L_B}
    v_add_u32 v137, s46, v137
    s_and_b32 s46, s3, 1
    s_lshl_b32 s46, s46, 1
    v_xor_b32 v138, s46, v10
    v_xor_b32 v139, 1, v138
    v_lshl_add_u32 v138, v138, 5, v137
    v_lshl_add_u32 v139, v139, 5, v137
    v_lshrrev_b32 v140, 1, v5
    v_lshlrev_b32 v140, 16, v140
    v_lshl_add_u32 v140, v6, 4, v140
    s_lshl_b32 s46, s40, 3
    s_lshr_b32 s47, s3, 1
    s_add_u32 s46, s46, s47
    s_lshl_b32 s46, s46, 14
    s_lshl_b32 s47, s41, 9
    s_add_u32 s46, s46, s47
    s_and_b32 s47, s3, 1
    s_lshl_b32 s47, s47, 8
    s_add_u32 s46, s46, s47
    s_add_u32 s58, s46, {OBUF}
    """)
    a(f"""
    v_mov_b32 v89, s{S_TAG}
    v_mov_b32 v91, s{S_TAG}
    v_lshlrev_b32 v141, 9, v5
    v_lshl_add_u32 v141, v6, 4, v141
    s_lshl_b32 s45, s61, 14
    s_lshr_b32 s46, s3, 1
    s_lshl_b32 s47, s46, 12
    s_add_u32 s45, s45, s47
    s_and_b32 s47, s3, 1
    s_lshl_b32 s47, s47, 8
    s_add_u32 s45, s45, s47
    s_add_u32 s66, s45, {OBUF}
    s_lshr_b32 s45, s61, 2
    s_lshl_b32 s45, s45, 9
    s_lshl_b32 s47, s46, 7
    s_add_u32 s45, s45, s47
    s_add_u32 s67, s45, {STB}
    v_lshlrev_b32 v142, 4, v5
    s_mul_i32 s46, s46, {ALS}
    s_and_b32 s47, s3, 1
    s_lshl_b32 s47, s47, 6
    s_add_u32 s46, s46, s47
    s_add_u32 s46, s46, {L_AL}
    v_lshlrev_b32 v143, 4, v7
    v_lshl_add_u32 v143, v8, 1, v143
    v_lshrrev_b32 v144, 5, v0
    v_lshl_add_u32 v143, v144, 3, v143
    v_add_u32 v143, s46, v143
    s_add_u32 s56, s64, 20
    """)
    lds_wait(F_Q, 1, sleep=1)
    stamp(4)
    for t in range(8):
        a(f"ds_read_b128 {vr(QR+4*t,4)}, v11 offset:{t*64}")
    a(f"ds_read_b32 v3, v1 offset:{F_FAST}")
    for t in range(8):
        a(f"s_waitcnt lgkmcnt({8-t})")
        a(f"v_mfma_f32_16x16x32_bf16 v[80:83], {vr(KR+4*t,4)}, {vr(QR+4*t,4)}, {'0' if t==0 else 'v[80:83]'}")
    a(f"""
    v_cvt_pk_bf16_f32 v84, v80, v81
    v_cvt_pk_bf16_f32 v85, v82, v83
    s_mov_b32 exec_lo, 0x00030003
    s_mov_b32 exec_hi, 0x00030003
    ds_write_b64 v12, v[84:85]
    s_waitcnt lgkmcnt(0)
    v_readfirstlane_b32 s65, v3
    """)
    sig_add(F_S)
    stamp(5)
    lds_wait(F_S, 8)
    a(f"""
    ds_read_b64 v[86:87], v13
    s_waitcnt lgkmcnt(0)
    v_lshlrev_b32 v92, 16, v86
    v_and_b32 v93, 0xffff0000, v86
    v_lshlrev_b32 v94, 16, v87
    v_and_b32 v95, 0xffff0000, v87
    v_max_f32 v96, v92, v93
    v_max3_f32 v96, v96, v94, v95
    """)
    red("v_max_f32", [96], ROR(8, 4, 2, 1) + ["x16"], [97])
    for i in range(4): a(f"v_sub_f32 v{92+i}, v{92+i}, v96")
    for i in range(4): a(f"v_mul_f32 v{92+i}, s57, v{92+i}")
    for i in range(4): a(f"v_exp_f32 v{92+i}, v{92+i}")
    a(f"""
    v_add_f32 v98, v92, v93
    v_add_f32 v99, v94, v95
    v_cvt_pk_bf16_f32 v92, v92, v93
    v_cvt_pk_bf16_f32 v93, v94, v95
    v_add_f32 v98, v98, v99
    ds_write_b64 v15, v[92:93]
    s_cmp_lg_u32 s3, 0
    s_cbranch_scc1 L_nostat
    """)
    red("v_add_f32", [98], ROR(8, 4, 2, 1) + ["x16"], [97])
    a(f"""
    v_mov_b32 v97, s{S_TAG}
    v_mov_b32 v99, s{S_TAG}
    v_lshlrev_b32 v14, 9, v14
    s_lshl_b32 s46, s40, 10
    s_lshl_b32 s47, s41, 4
    s_add_u32 s46, s46, s47
    s_add_u32 s46, s46, {STB}
    s_mov_b32 exec_lo, 1
    s_mov_b32 exec_hi, 1
    """)
    store_near("buffer_store_dwordx4 v[96:99], v14, s[48:51], s46 offen")
    a("s_mov_b64 exec, -1\nL_nostat:\ns_waitcnt lgkmcnt(0)")
    PR = 16
    for t in range(4):
        a(f"ds_read_b128 {vr(PR+4*t,4)}, v136 offset:{t*64}")
    stamp(6)
    if not o["yearly"]: a(f"s_cmp_eq_u32 s60, {T_DN}\ns_cbranch_scc1 L_ojob\nL_q:")
    STL = ["buffer_load_dwordx4 v[48:51], v142, s[48:51], s67 offen sc1", "buffer_load_dwordx4 v[52:55], v142, s[48:51], s67 offen offset:64 sc1"]
    for t in range(4):
        if t == 0 and not o["nopoll"] and o["warm"] == 1:
            a.c("touch the hand-off lines once so that the later polls hit this XCD's L2")
            a(f"s_cmp_eq_u32 s60, {T_WO}\ns_cbranch_scc0 L_nowarm\nbuffer_load_dword v58, v141, s[48:51], s66 offen sc1\nbuffer_load_dword v59, v141, s[48:51], s66 offen offset:2048 sc1\nL_nowarm:")
        if t == 3 and not o["nopoll"]:
            a(f"s_cmp_eq_u32 s60, {T_WO}\ns_cbranch_scc0 L_nostl\n" + "\n".join(STL) + "\nL_nostl:")
        if t == 3 and o["hint"]:
            a.c("wave 7 marks this workgroup as (nearly) loaded: an early notice for the final reducers")
            a(f"s_cmp_eq_u32 s3, 7\ns_cbranch_scc0 L_nomark\ns_sub_u32 s46, s56, {o['lead']}\ns_lshl_b32 s47, s40, 7\ns_add_u32 s47, s47, {AG}\ns_lshl_b32 s45, s41, 2\nv_mov_b32 v60, s45")
            if o["lead"] >= 0:
                lds_wait(F_PROG, "s46")
                a("s_mov_b64 exec, 1")
                store_near("buffer_store_dword v89, v60, s[48:51], s47 offen")
            a("s_mov_b64 exec, -1\nL_nomark:")
        lds_wait(F_PROG, "s56", sleep=1 if t < 3 else 0)
        a(f"""
        ds_read_b64_tr_b16 v[92:93], v138 offset:{t*16384}
        ds_read_b64_tr_b16 v[94:95], v138 offset:{t*16384+8192}
        ds_read_b64_tr_b16 v[96:97], v139 offset:{t*16384}
        ds_read_b64_tr_b16 v[98:99], v139 offset:{t*16384+8192}
        """)
        if t < 3: a("s_add_u32 s56, s56, 4")
        else: a("s_mov_b32 exec_lo, 0xffff\ns_mov_b32 exec_hi, 0xffff" if False else "s_mov_b32 s56, 0")
        a(f"""
        s_waitcnt lgkmcnt(2)
        v_mfma_f32_16x16x32_bf16 v[80:83], {vr(PR+4*t,4)}, v[92:95], {'0' if t==0 else 'v[80:83]'}
        s_waitcnt lgkmcnt(0)
        v_mfma_f32_16x16x32_bf16 v[84:87], {vr(PR+4*t,4)}, v[96:99], {'0' if t==0 else 'v[84:87]'}
        """)
    a("s_mov_b32 exec_lo, 0xffff\ns_mov_b32 exec_hi, 0xffff\nv_mov_b32 v88, v80\nv_mov_b32 v90, v84")
    store_near("buffer_store_dwordx4 v[88:91], v140, s[48:51], s58 offen")
    if o["hint"] and o["lead"] < 0:
        a("s_cmp_eq_u32 s3, 7\ns_cbranch_scc0 L_nomark2\ns_mov_b64 exec, 1")
        store_near("buffer_store_dword v89, v60, s[48:51], s47 offen")
        a("L_nomark2:")
    a("s_mov_b64 exec, -1")
    stamp(7)
    a(f"s_cmp_eq_u32 s60, {T_WO}\ns_cbranch_scc0 L_adone")
    a.c("---- combine the 8 key chunks for this wo tile (loader and helper end by then: s_barrier joins the 8 waves)")
    def BL(r): return f"buffer_load_dwordx4 v[{r}:{r+3}], v141, s[48:51], s66 offen sc1\nbuffer_load_dwordx4 v[{r+4}:{r+7}], v141, s[48:51], s66 offen offset:2048 sc1"
    if not o["nopoll"]:
        a(BL(92) + "\ns_waitcnt vmcnt(3)")
        chk([49, 51, 53, 55])
        a("s_cbranch_scc1 L_stretry\nL_stok:")
    a("v_max_f32 v56, v48, v52")
    red("v_max_f32", [56], ["x16", "x32"], [57])
    a(f"""
    v_sub_f32 v14, v48, v56
    v_sub_f32 v15, v52, v56
    v_mul_f32 v14, s57, v14
    v_mul_f32 v15, s57, v15
    v_exp_f32 v14, v14
    v_exp_f32 v15, v15
    s_mov_b32 s13, 0x4000
    v_mul_f32 v56, v14, v50
    v_fmac_f32 v56, v15, v54
    """)
    red("v_add_f32", [56], ["x16", "x32"], [57])
    a("v_rcp_f32 v56, v56\nv_mul_f32 v14, v14, v56\nv_mul_f32 v15, v15, v56")
    if not o["nopoll"]:
        if o["pipeb2"]:
            a.c("two polls in flight, half a round trip apart")
            a(BL(64) + "\nL_bchk:\ns_waitcnt vmcnt(2)")
            chk([93, 95, 97, 99])
            a("s_cbranch_scc0 L_bok\n" + BL(92) + "\ns_waitcnt vmcnt(2)")
            chk([65, 67, 69, 71])
            a("s_cbranch_scc0 L_bok2\n" + BL(64) + "\ns_sub_u32 s13, s13, 1\ns_cbranch_scc0 L_bchk")
            a("L_bok2:\nv_mul_f32 v72, v64, v14\nv_mul_f32 v74, v66, v14\nv_fmac_f32 v72, v68, v15\nv_fmac_f32 v74, v70, v15\ns_branch L_bsum\nL_bok:")
        else:
            a("L_bchk:\ns_waitcnt vmcnt(0)")
            chk([93, 95, 97, 99])
            a("s_cbranch_scc0 L_bok\n" + ("s_mov_b64 exec, vcc\n" if o["maskb"] else "") + BL(92))
            if late:
                a.c("late half of the tile already in LDS? then fetch its operands while the poll is in flight")
                a(f"s_cmp_lg_u32 s56, 0\ns_cbranch_scc1 L_bnext\nds_read_b32 v2, v1 offset:{F_PROG}\ns_waitcnt lgkmcnt(0)\nv_cmp_le_i32 vcc, {KB_WO+40}, v2\ns_cbranch_vccz L_bnext\ns_mov_b32 s56, 1")
                wread(100, 1, 0)
                a("L_bnext:")
            a("s_sub_u32 s13, s13, 1\ns_cbranch_scc0 L_bchk\nL_bok:\ns_mov_b64 exec, -1")
    stamp(8)
    a(f"""
    v_mul_f32 v72, v92, v14
    v_mul_f32 v74, v94, v14
    v_fmac_f32 v72, v96, v15
    v_fmac_f32 v74, v98, v15
    L_bsum:
    v_permlane32_swap_b32 v72, v74
    v_add_f32 v72, v72, v74
    """)
    red("v_add_f32", [72], ["x16"], [73])
    a("v_cvt_pk_bf16_f32 v72, v72, v72\nds_write_b16 v143, v72")
    if late:
        a("s_cmp_lg_u32 s56, 0\ns_cbranch_scc1 L_lateok")
        lds_wait(F_PROG, KB_WO + 40)
        wread(100, 1, 0)
        a("L_lateok:")
    a(f"""
    s_waitcnt lgkmcnt(0)
    s_barrier
    s_cmp_eq_u32 s3, 7
    s_cbranch_scc1 L_adone
    L_ojob2:
    """)
    a.c("---- out job: a[4x64] x W[64x448], 64 columns per wave")
    stamp(9)
    a("ds_read_b128 v[76:79], v101\nds_read_b128 v[80:83], v101 offset:64\ns_waitcnt lgkmcnt(1)")
    for jt in range(4):
        a(f"v_mfma_f32_16x16x32_bf16 {vr(48+4*jt,4)}, v[76:79], {vr(WB+4*jt,4)}, 0")
    a("s_waitcnt lgkmcnt(0)")
    for jt in range(4):
        a(f"v_mfma_f32_16x16x32_bf16 {vr(48+4*jt,4)}, v[80:83], {vr(WB+16+4*jt,4)}, {vr(48+4*jt,4)}")
    for jt in range(4):
        a(f"v_perm_b32 v{84+jt}, v{48+4*jt}, v103, s{4+jt}")
    a("buffer_store_dwordx4 v[84:87], v102, s[48:51], s59 offen sc1")
    stamp(10)
    a(f"s_cmp_eq_u32 s60, {T_DN}\ns_cbranch_scc1 {'L_k' if o['yearly'] else 'L_q'}\nL_adone:")
    if stamps:
        i8 = 72 + 2 * used.index(8); i7 = 72 + 2 * used.index(7)
        a(f"s_waitcnt lgkmcnt(0)\ns_add_u32 s10, s38, {STAMP_OFF}\ns_addc_u32 s11, s39, 0\ns_mul_i32 s12, s2, {NST*8}\ns_lshl_b32 s13, s3, 3\ns_add_u32 s12, s12, s13\nv_mov_b32 v1, s12\ns_mov_b64 exec, 1")
        a(f"v_mov_b32 v2, s{i8}\nv_mov_b32 v3, s{i8+1}\nglobal_store_dwordx2 v1, v[2:3], s[10:11] offset:{8*28}\ns_nop 1")
        a(f"v_mov_b32 v2, s{i7}\nv_mov_b32 v3, s{i7+1}\nglobal_store_dwordx2 v1, v[2:3], s[10:11] offset:{8*36}\ns_nop 1")
        a("s_cmp_lg_u32 s3, 0\ns_cbranch_scc1 L_exit")
        flush_stamps()
    a("s_endpgm")
    a("L_ojob:")
    if not o["yearly"]: a("s_cmp_eq_u32 s3, 7\ns_cbranch_scc1 L_q")
    lds_wait(F_A, 8, sleep=1)
    a("s_branch L_ojob2")
    if not o["nopoll"]:
        a("L_stretry:")
        poll(STL, [49, 51, 53, 55])
        a("s_branch L_stok")

    a.c("======== helper wave (wave 1): layernorm, hand-off gathers, final reduction")
    a("L_helper:\ns_setprio 3")
    srd(52, 16, 3584)
    a(f"""
    s_getreg_b32 s65, hwreg(HW_REG_XCC_ID, 0, 4)
    s_cmp_eq_u32 s60, {T_P}
    s_cbranch_scc0 L_noln0
    v_mul_u32_u24 v9, 896, v5
    v_lshl_add_u32 v9, v6, 3, v9
    """)
    XR = 16; U = 32
    for u in range(7):
        a(f"buffer_load_dwordx2 {vr(XR+2*u,2)}, v9, s[52:55], 0 offen offset:{u*128}")
    a(f"""
    v_mul_u32_u24 v9, {XNS}, v5
    v_lshrrev_b32 v10, 3, v6
    v_lshl_add_u32 v9, v10, 6, v9
    v_lshl_add_u32 v9, v8, 4, v9
    v_and_b32 v10, 4, v6
    v_lshl_add_u32 v9, v10, 1, v9
    v_add_u32 v9, {L_XN}, v9
    L_noln0:
    """)
    get_tag()
    a.c("plain store: shows up (through L2) only for workgroups on the same XCD")
    a(f"""
    s_lshl_b32 s58, s40, 7
    s_add_u32 s58, s58, {XB}
    s_add_u32 s8, s65, s{S_TAG}
    s_mov_b32 s9, s8
    v_mov_b32 v66, s8
    s_lshl_b32 s45, s41, 2
    v_mov_b32 v68, s45
    s_mov_b64 exec, 1
    buffer_store_dword v66, v68, s[48:51], s58 offen
    s_mov_b64 exec, -1
    """)
    a(f"""
    s_cmp_eq_u32 s60, {T_P}
    s_cbranch_scc0 L_noln
    s_waitcnt vmcnt(1)
    """)
    for u in range(14):
        a(f"v_lshlrev_b32 v{U+2*u}, 16, v{XR+u}\nv_and_b32 v{U+2*u+1}, 0xffff0000, v{XR+u}")
    a(f"v_pk_add_f32 v[60:61], v[{U}:{U+1}], v[{U+2}:{U+3}]")
    for u in range(2, 14):
        a(f"v_pk_add_f32 v[60:61], v[60:61], v[{U+2*u}:{U+2*u+1}]")
    a("v_add_f32 v60, v60, v61")
    red("v_add_f32", [60], ROR(8, 4, 2, 1))
    a(f"v_mul_f32 v60, {f2u(1/448)}, v60\nv_mov_b32 v61, v60")
    for u in range(14):
        a(f"v_pk_add_f32 v[64:65], v[{U+2*u}:{U+2*u+1}], v[60:61] neg_lo:[0,1] neg_hi:[0,1]")
        a("v_pk_mul_f32 v[62:63], v[64:65], v[64:65]" if u == 0 else "v_pk_fma_f32 v[62:63], v[64:65], v[64:65], v[62:63]")
    a("v_add_f32 v62, v62, v63")
    red("v_add_f32", [62], ROR(8, 4, 2, 1))
    a(f"v_mul_f32 v62, {f2u(1/448)}, v62")
    round_bf16(62, 62)
    a(f"v_add_f32 v62, {f2u(1e-5)}, v62")
    round_bf16(62, 62)
    a("v_sqrt_f32 v62, v62")
    round_bf16(62, 62)
    a("v_rcp_f32 v62, v62")
    round_bf16(60, 60)
    a("v_mov_b32 v61, v60\nv_mov_b32 v63, v62")
    for u in range(14):
        a(f"v_pk_add_f32 v[64:65], v[{U+2*u}:{U+2*u+1}], v[60:61] neg_lo:[0,1] neg_hi:[0,1]")
        a(f"v_cvt_pk_bf16_f32 v64, v64, v65\nv_and_b32 v65, 0xffff0000, v64\nv_lshlrev_b32 v64, 16, v64")
        a(f"v_pk_mul_f32 v[64:65], v[64:65], v[62:63]\nv_cvt_pk_bf16_f32 v{XR+u}, v64, v65")
    for u in range(7):
        a(f"ds_write_b64 v9, {vr(XR+2*u,2)} offset:{u*128}")
    a("s_waitcnt lgkmcnt(0)")
    sig_set(F_XN, 1)
    a("L_noln:")
    stamp(16)
    def xb_check():
        a.c("all 32 workgroups of this kv head on this XCD? then hand-offs inside the group can stay in L2")
        a(f"s_add_u32 s4, s38, s58\ns_addc_u32 s5, s39, 0\ns_mov_b32 s10, 0\ns_load_dwordx16 s[16:31], s[4:5], 0\ns_load_dwordx16 s[84:99], s[4:5], 64\ns_waitcnt lgkmcnt(0)")
        for b in (16, 84):
            for i in range(8): a(f"s_cmp_eq_u64 s[{b+2*i}:{b+1+2*i}], s[8:9]\ns_cbranch_scc0 L_mixed")
        a(f"s_mov_b32 s10, {o['fast']}\nL_mixed:\ns_mov_b32 s68, s10")
        sig_set(F_FAST, "s10")
    def tb_look(rep):
        a(f"s_add_u32 s4, s38, {TB + rep * 1024}\ns_addc_u32 s5, s39, 0")
        for i in range(8): a(f"s_load_dwordx2 s[{16+2*i}:{17+2*i}], s[4:5], {128*i}")
        a("s_mov_b32 s6, 0\ns_waitcnt lgkmcnt(0)")
        for i in range(8):
            a(f"s_sub_u32 s7, s{16+2*i}, s70\ns_cmp_eq_u32 s{17+2*i}, s{S_TAG}\ns_cselect_b32 s7, s7, 0")
            a("s_add_u32 s6, s6, s7" if o["tmean"] else "s_min_i32 s6, s6, s7")
        if o["tmean"]: a("s_ashr_i32 s6, s6, 3\ns_min_i32 s6, s6, 300")
        a("s_max_i32 s6, s6, -300")
        sig_set(F_T0, "s6")
    if not o["sched"]:
        lds_wait(F_PROG, o["tb2at"], sleep=2)
        xb_check()
    if o["sched"]:
        a.c("earliest start among the XCDs: one workgroup per id class publishes, everybody takes the minimum of what is there")
        a(f"""
        s_mov_b32 s6, 0
        s_cmp_eq_u32 s60, {T_P}
        s_cbranch_scc1 L_tb2
        s_cmp_eq_u32 s41, 8
        s_cbranch_scc0 L_notb
        v_mov_b32 v16, s70
        v_mov_b32 v17, s{S_TAG}
        v_lshlrev_b32 v18, 10, v0
        s_lshl_b32 s45, s40, 7
        s_add_u32 s45, s45, {TB}
        s_mov_b64 exec, 3
        buffer_store_dwordx2 v[16:17], v18, s[48:51], s45 offen sc1
        s_mov_b64 exec, -1
        L_notb:
        """)
        tb_look(0)
        lds_wait(F_PROG, o["tb2at"], sleep=2)
        a("L_tb2:")
        xb_check()
        tb_look(1)
        if stamps:
            k = len(used)
            a(f"s_ashr_i32 s11, s6, 31\ns_add_u32 s{72+2*k}, s70, s6\ns_addc_u32 s{73+2*k}, s71, s11"); used.append(24)
            stamp(25)
    a(f"""
    s_sub_u32 s59, s2, 128
    s_and_b32 s45, s59, 3
    s_lshr_b32 s46, s59, 2
    s_mul_i32 s47, s45, 28
    s_add_u32 s47, s47, s46
    s_lshl_b32 s66, s47, 12
    s_mul_i32 s45, s45, 896
    s_lshr_b32 s47, s46, 2
    s_lshl_b32 s47, s47, 7
    s_add_u32 s45, s45, s47
    s_and_b32 s46, s46, 3
    s_lshl_b32 s46, s46, 3
    s_add_u32 s63, s45, s46
    v_and_b32 v12, 1, v5
    v_lshlrev_b32 v12, 6, v12
    v_lshrrev_b32 v13, 1, v5
    v_lshl_add_u32 v12, v13, 5, v12
    v_lshl_add_u32 v12, v8, 1, v12
    s_mul_i32 s45, s42, {RB_B}
    s_lshl_b32 s46, s40, 11
    s_add_u32 s45, s45, s46
    s_add_u32 s45, s45, {RBUF}
    v_lshlrev_b32 v9, 4, v0
    v_lshlrev_b32 v10, 3, v0
    v_add_u32 v11, {L_QL}, v10
    s_add_u32 s47, s45, {RNEAR-RBUF}
    """)
    lds_wait(F_PROG, o["qa"], sleep=2)
    stamp(22)
    if not o["nopoll"]:
        a.c("q: the copy that same-XCD producers show through L2; a group not known to share an XCD alternates with the write-through copy")
        a(f"""
        s_xor_b32 s7, s45, s47
        s_cmp_eq_u32 s68, 0
        s_cselect_b32 s7, s7, 0
        s_mov_b32 s13, {o['qrounds']}
        s_mov_b32 s12, 0x4000
        L_qpoll:
        buffer_load_dwordx4 v[16:19], v9, s[48:51], s47 offen {o['pol_n']}
        buffer_load_dwordx4 v[20:23], v9, s[48:51], s47 offen offset:1024 {o['pol_n']}
        s_sub_u32 s13, s13, 1
        s_xor_b32 s47, s47, s7
        s_waitcnt vmcnt(0)
        """)
        chk([17, 19, 21, 23])
        a("s_cbranch_scc0 L_gotq\ns_sleep 4\ns_sub_u32 s12, s12, 1\ns_cbranch_scc0 L_qpoll")
    a("L_gotq:")
    if stamps:
        k = len(used)
        a(f"s_sub_u32 s7, {o['qrounds']}, s13\ns_mul_i32 s7, s7, 100\ns_add_u32 s{72+2*k}, s70, s7\ns_addc_u32 s{73+2*k}, s71, 0"); used.append(27)
    a(f"""
    ds_write2_b32 v11, v16, v18 offset0:0 offset1:1
    ds_write2_b32 v11, v20, v22 offset0:{QLS//4} offset1:{QLS//4+1}
    """)
    a("s_waitcnt lgkmcnt(0)")
    sig_set(F_Q, 1)
    stamp(17)
    a(f"s_cmp_eq_u32 s60, {T_DN}\ns_cbranch_scc0 L_nodn")
    a(f"""
    v_mul_u32_u24 v14, {RB_B}, v5
    v_lshl_add_u32 v14, v6, 4, v14
    s_lshl_b32 s46, s61, 8
    s_add_u32 s46, s46, {RBUF+64*256}
    s_add_u32 s47, s46, {28*256}
    v_mul_u32_u24 v15, {ALS}, v5
    v_lshrrev_b32 v30, 3, v6
    v_lshl_add_u32 v15, v30, 6, v15
    v_lshl_add_u32 v15, v8, 4, v15
    v_bfe_u32 v30, v6, 2, 1
    v_lshl_add_u32 v15, v30, 3, v15
    v_add_u32 v15, {L_AL}, v15
    """)
    lds_wait(F_PROG, o["h_at"], sleep=2)
    if not o["nopoll"]:
        a(f"""
        s_mov_b32 s12, 0x4000
        s_mov_b32 s7, {RNEAR-RBUF}
        s_cmp_eq_u32 s68, 0
        s_cselect_b32 s13, s7, 0
        L_hpoll:
        s_add_u32 s4, s46, s7
        s_add_u32 s5, s47, s7
        buffer_load_dwordx4 v[32:35], v14, s[48:51], s4 offen sc1
        buffer_load_dwordx4 v[36:39], v14, s[48:51], s5 offen sc1
        s_xor_b32 s7, s7, s13
        s_waitcnt vmcnt(0)
        """)
        chk([33, 35, 37, 39])
        a("s_cbranch_scc0 L_goth\ns_sleep 4\ns_sub_u32 s12, s12, 1\ns_cbranch_scc0 L_hpoll\nL_goth:")
    for i, (gq, uq) in enumerate(((32, 36), (34, 38))):
        a(f"""
        v_lshlrev_b32 v40, 16, v{gq}
        v_and_b32 v41, 0xffff0000, v{gq}
        v_lshlrev_b32 v42, 16, v{uq}
        v_and_b32 v43, 0xffff0000, v{uq}
        v_max_f32 v40, 0, v40
        v_max_f32 v41, 0, v41
        v_mul_f32 v40, v40, v42
        v_mul_f32 v41, v41, v43
        v_cvt_pk_bf16_f32 v{28+i}, v40, v41
        """)
    a("ds_write_b64 v15, v[28:29]\ns_waitcnt lgkmcnt(0)")
    sig_set(F_A, 8)
    a("L_nodn:")
    stamp(18)
    if o["warm"] == 2 and not o["nopoll"]:
        a.c("the lightest workgroups touch their group's o hand-off lines once, so that the later polls hit this XCD's L2")
        a(f"""
        s_cmp_ge_u32 s41, 28
        s_cbranch_scc0 L_nowarm2
        s_lshl_b32 s46, s40, 17
        s_sub_u32 s47, s41, 28
        s_lshl_b32 s47, s47, 15
        s_add_u32 s46, s46, s47
        s_add_u32 s46, s46, {OBUF}
        v_lshlrev_b32 v14, 7, v0
        """)
        for i in range(4):
            a(f"buffer_load_dword v15, v14, s[48:51], s46 offen sc1\ns_add_u32 s46, s46, 8192")
        a("L_nowarm2:")
    if o["hint"] and not o["nopoll"]:
        a(f"""
        s_cmp_lt_u32 s2, 8
        s_cbranch_scc0 L_noagg
        s_lshl_b32 s46, s40, 7
        s_add_u32 s47, s46, {HC}
        s_add_u32 s46, s46, {AG}
        v_and_b32 v14, 31, v0
        v_lshlrev_b32 v14, 2, v14
        v_lshlrev_b32 v15, 10, v0
        v_mov_b32 v17, s{S_TAG}
        """)
        lds_wait(F_PROG, 14 + o["aggat"], sleep=2)
        a(f"""
        s_mov_b32 s12, 0x4000
        L_agg:
        buffer_load_dword v16, v14, s[48:51], s46 offen sc1
        s_waitcnt vmcnt(0)
        v_cmp_ne_u32 vcc, s{S_TAG}, v16
        s_cbranch_vccz L_aggok
        s_sub_u32 s12, s12, 1
        s_cbranch_scc0 L_agg
        L_aggok:
        s_mov_b64 exec, 0xff
        buffer_store_dword v17, v15, s[48:51], s47 offen sc1
        s_mov_b64 exec, -1
        L_noagg:
        """)
    a(f"""
    s_cmp_lt_u32 s59, 112
    s_cbranch_scc0 L_hdone
    buffer_load_ushort v13, v12, s[52:55], s63 offen
    s_add_u32 s46, s66, {YBUF}
    s_add_u32 s45, s66, {FBUF}
    s_mov_b32 s4, 0x0c0c0400
    s_mov_b32 s5, 0x0c040100
    s_mov_b32 s6, 0x04020100
    s_and_b32 s7, s{S_TAG}, 0xff
    v_mov_b32 v20, s7
    s_bfe_u32 s7, s{S_TAG}, 0x80008
    v_mov_b32 v21, s7
    s_bfe_u32 s7, s{S_TAG}, 0x80010
    v_mov_b32 v22, s7
    s_lshr_b32 s7, s{S_TAG}, 24
    v_mov_b32 v23, s7
    s_add_u32 s47, s64, {o['yat']}
    """)
    srd(52, 34, 3584)
    lds_wait(F_PROG, "s47", sleep=2)
    poll(["buffer_load_dwordx4 v[16:19], v9, s[48:51], s46 offen sc1", "s_mov_b32 exec_hi, 0xffff",
          "buffer_load_dwordx4 v[20:23], v9, s[48:51], s46 offen offset:1024 sc1", "s_mov_b32 exec_hi, -1"], [40, 41], sleep=4,
         pre=e4_tags([16, 20], 40))
    for k in range(4): a(f"v_add_f32 v{16+k}, v{16+k}, v{20+k}")
    red4(16)
    round_bf16(16, 16)
    a(f"v_mul_f32 v20, {f2u(-LOG2E)}, v16\nv_exp_f32 v20, v20\nv_add_f32 v20, 1.0, v20\nv_rcp_f32 v20, v20\nv_mul_f32 v16, v16, v20")
    round_bf16(16, 16)
    a("v_lshlrev_b32 v13, 16, v13")
    stamp(19)
    if o["hint"] and not o["nopoll"]:
        a(f"""
        s_and_b32 s47, s65, 7
        s_lshl_b32 s47, s47, 10
        s_add_u32 s47, s47, {HC}
        v_lshlrev_b32 v14, 7, v0
        s_mov_b32 s12, 0x4000
        s_mov_b64 exec, 0xff
        L_hint:
        buffer_load_dword v15, v14, s[48:51], s47 offen sc1
        s_waitcnt vmcnt(0)
        v_cmp_ne_u32 vcc, s{S_TAG}, v15
        s_cbranch_vccz L_hintok
        s_sub_u32 s12, s12, 1
        s_cbranch_scc0 L_hint
        L_hintok:
        s_mov_b64 exec, -1
        """)
        if o["hdelay"]: a(f"s_sleep {o['hdelay']}")
        stamp(23)
    poll([f"buffer_load_dwordx4 {vr(24+4*t,4)}, v9, s[48:51], s45 offen offset:{t*1024} sc1" for t in range(4)],
         [40, 41, 42, 43], pre=e4_tags([24, 28, 32, 36], 40))
    stamp(20)
    if stamps:
        k = len(used)
        a(f"s_sub_u32 s7, 0x4001, s12\ns_mul_i32 s7, s7, 100\ns_add_u32 s{72+2*k}, s70, s7\ns_addc_u32 s{73+2*k}, s71, 0"); used.append(26)
    for k in (0, 2): a(f"v_pk_add_f32 v[{24+k}:{25+k}], v[{24+k}:{25+k}], v[{28+k}:{29+k}]\nv_pk_add_f32 v[{32+k}:{33+k}], v[{32+k}:{33+k}], v[{36+k}:{37+k}]")
    for k in (0, 2): a(f"v_pk_add_f32 v[{24+k}:{25+k}], v[{24+k}:{25+k}], v[{32+k}:{33+k}]")
    red4(24)
    round_bf16(24, 24)
    a("v_mul_f32 v24, v24, v16")
    round_bf16(24, 24)
    a(f"""
    v_add_f32 v24, v24, v13
    v_cvt_pk_bf16_f32 v24, v24, v24
    s_mov_b32 exec_lo, 0x000f000f
    s_mov_b32 exec_hi, 0x000f000f
    buffer_store_short v24, v12, s[52:55], s63 offen {'sc1' if o['outsc1'] else ''}
    s_cmp_lg_u32 s59, 0
    s_cbranch_scc1 L_hdone
    s_mov_b64 exec, 1
    v_mov_b32 v2, s{S_TAG}
    v_mov_b32 v3, 0
    buffer_store_dword v2, v3, s[48:51], 0 offen offset:{EPOCH}
    L_hdone:
    """)
    stamp(21)
    flush_stamps()
    a("L_exit:\ns_endpgm\nL_codeend:")
    body = hazard.fix(a.text())
    return kernel_file([(NAME + "_kernel", body, 152, 100, 152)], [(NAME + "_kernel", 256, 640, LDS_BYTES)])

if __name__ == "__main__":
    out = sys.argv[1]
    kw = {}
    for x in sys.argv[2:]:
        k, v = x.split("=")
        kw[k] = (v.replace("def", "").replace("+", " ") if k.startswith("pol") else int(v))
    open(out, "w").write(gen(**kw))
```
